```python
import torch

def _softmax(x, axis=-1):
    return torch.softmax(x, dim=axis)
def _gelu(x):
    return torch.nn.functional.gelu(x, approximate="tanh")
def _silu(x):
    return torch.nn.functional.silu(x)
def _sigmoid(x):
    return torch.sigmoid(x)
def _layernorm(x, axis=-1, eps=1e-5):
    m = x.mean(dim=axis, keepdim=True)
    v = x.var(dim=axis, keepdim=True, unbiased=False)
    return (x - m) / torch.sqrt(v + eps)
def _scatter_add(tgt, idx, src, axis=0):
    return tgt.clone().index_add_(axis, idx, src)
def _segment_sum(src, seg, n):
    out = torch.zeros((n,) + src.shape[1:], dtype=src.dtype)
    return out.index_add_(0, seg, src)
def _pad(x, pw):
    flat = tuple(v for pair in reversed(pw) for v in pair)
    return torch.nn.functional.pad(x, flat)

kernel_name = 'interleave_layers__spectral_fnet__glu_gated_glu__prompt'

def setup_inputs():

    _w = (lambda a: (lambda t: t.to(torch.bfloat16) if t.is_floating_point() else t)(torch.as_tensor(a)))
    def _A_setup():
        B, S, D = 1, 2048, 640
        ns = torch.arange(S)[:, None] * torch.arange(S)[None, :]
        nd = torch.arange(D)[:, None] * torch.arange(D)[None, :]
        Ws_re = torch.cos(-2.0 * torch.pi * ns / S).to(float)
        Ws_im = torch.sin(-2.0 * torch.pi * ns / S).to(float)
        Wd_re = torch.cos(-2.0 * torch.pi * nd / D).to(float)
        Wd_im = torch.sin(-2.0 * torch.pi * nd / D).to(float)
        return {
            "x": _w((lambda *s: torch.randn(*s, dtype=torch.bfloat16) * 0.05)(B, S, D)),
            "dft_seq_re": _w(Ws_re),
            "dft_seq_im": _w(Ws_im),
            "dft_hid_re": _w(Wd_re),
            "dft_hid_im": _w(Wd_im),
        }
    _A_in = _A_setup()

    def _B_setup():
        B, S, D, F = 1, 2048, 640, 1536
        return {
            "x": _w((lambda *s: torch.randn(*s, dtype=torch.bfloat16) * 0.05)(B, S, D)),
            "w_gate": _w((lambda *s: torch.randn(*s, dtype=torch.bfloat16) * 1.6)(D, F)),
            "w_up": _w((lambda *s: torch.randn(*s, dtype=torch.bfloat16) * 0.8)(D, F)),
            "w_down": _w((lambda *s: torch.randn(*s, dtype=torch.bfloat16) * 0.8)(F, D)),
        }
    _B_in = _B_setup()

    return {
        "A_x": _A_in["x"],
        "A_dft_seq_re": _A_in["dft_seq_re"],
        "A_dft_seq_im": _A_in["dft_seq_im"],
        "A_dft_hid_re": _A_in["dft_hid_re"],
        "A_dft_hid_im": _A_in["dft_hid_im"],
        "B_x": _B_in["x"],
        "B_w_gate": _B_in["w_gate"],
        "B_w_up": _B_in["w_up"],
        "B_w_down": _B_in["w_down"],
    }

def reference(A_x, A_dft_seq_re, A_dft_seq_im, A_dft_hid_re, A_dft_hid_im, B_x, B_w_gate, B_w_up, B_w_down):
    def _A_ref(x, dft_seq_re, dft_seq_im, dft_hid_re, dft_hid_im):
        a = torch.einsum("bsd,ed->bse", x, dft_hid_re)
        b = torch.einsum("bsd,ed->bse", x, dft_hid_im)
        y = torch.einsum("ts,bse->bte", dft_seq_re, a) - torch.einsum("ts,bse->bte", dft_seq_im, b)
        return y

    def _B_ref(x, w_gate, w_up, w_down):
        g = torch.einsum("bsd,df->bsf", x, w_gate)
        u = torch.einsum("bsd,df->bsf", x, w_up)
        h = _sigmoid(g) * u
        return torch.einsum("bsf,fd->bsd", h, w_down)

    x = A_x
    x = x + _A_ref(_layernorm(x, axis=-1), A_dft_seq_re, A_dft_seq_im, A_dft_hid_re, A_dft_hid_im)
    x = x + _B_ref(_layernorm(x, axis=-1), B_w_gate, B_w_up, B_w_down)
    x = x + _A_ref(_layernorm(x, axis=-1), A_dft_seq_re, A_dft_seq_im, A_dft_hid_re, A_dft_hid_im)
    x = x + _B_ref(_layernorm(x, axis=-1), B_w_gate, B_w_up, B_w_down)
    return x
```

```python
class Asm:
    def __init__(self):
        self.L = []
        self.launches = []
        self.kds = []
        self._lab = 0
    def __call__(self, s):
        for ln in s.split("\n"):
            self.L.append("    " + ln.strip() if ln.strip() and not ln.strip().endswith(":") else ln.strip())
    def label(self, base="L"):
        self._lab += 1
        return f"{base}_{self._lab}"
    def kernel_begin(self, name):
        self.L.append(f".p2align 8\n.globl {name}\n.type {name},@function\n{name}:")
    def kernel_end(self, name, vgpr, sgpr=102, agpr=0, extra=""):
        self("s_endpgm")
        acc = (vgpr + 3) // 4 * 4
        nfv = acc + agpr if agpr else vgpr
        self.kds.append(f""".p2align 6
.amdhsa_kernel {name}
  .amdhsa_next_free_vgpr {nfv}
  .amdhsa_next_free_sgpr {sgpr}
  .amdhsa_accum_offset {acc}
  .amdhsa_group_segment_fixed_size 0
  .amdhsa_kernarg_size 96
  .amdhsa_user_sgpr_count 2
  .amdhsa_user_sgpr_kernarg_segment_ptr 1
  .amdhsa_system_sgpr_workgroup_id_x 1
{extra}.end_amdhsa_kernel""")
    def launch(self, name, grid, block, lds):
        self.launches.append(f"; @launch kernel={name} grid=({grid},1,1) block=({block},1,1) lds={lds}")
    def text(self, header=""):
        return (header + "\n".join(self.launches) + "\n.amdgcn_target \"amdgcn-amd-amdhsa--gfx950\"\n.text\n"
                + "\n".join(self.L) + "\n.section .rodata,\"a\"\n" + "\n".join(self.kds) + "\n")

def stamp_begin(a):
    a("s_memrealtime s[90:91]")
STAMP_OFF = 200 << 20
def stamp_end(a, vt=0):
    a(f"""s_waitcnt vmcnt(0) lgkmcnt(0)
    s_memrealtime s[92:93]
    s_load_dwordx4 s[96:99], s[0:1], 80
    v_lshrrev_b32 v{vt+4}, 6, v0
    v_lshlrev_b32 v{vt+4}, 4, v{vt+4}
    s_waitcnt lgkmcnt(0)
    s_lshr_b32 s96, s96, 9
    s_and_b32 s96, s96, 63
    s_lshl_b32 s96, s96, 16
    s_lshl_b32 s97, s2, 7
    s_add_u32 s96, s96, s97
    s_add_u32 s96, s96, {STAMP_OFF}
    v_add_u32 v{vt+4}, s96, v{vt+4}
    s_mov_b64 exec, 1
    v_mov_b32 v{vt}, s90
    v_mov_b32 v{vt+1}, s91
    v_mov_b32 v{vt+2}, s92
    v_mov_b32 v{vt+3}, s93
    global_store_dwordx4 v{vt+4}, v[{vt}:{vt+3}], s[98:99]""")
```

```python
import re
REG = re.compile(r'\b([vas])(\d+)\b|\b([vas])\[(\d+):(\d+)\]|\b(vcc|exec|m0)\b')
TRANS = ("v_exp_f32","v_log_f32","v_rcp_f32","v_rsq_f32","v_sqrt_f32","v_sin_f32","v_cos_f32","v_rcp_iflag_f32")
def regs_of(op):
    out = set()
    for m in REG.finditer(op):
        if m.group(1): out.add((m.group(1), int(m.group(2))))
        elif m.group(3):
            for i in range(int(m.group(4)), int(m.group(5)) + 1): out.add((m.group(3), i))
        else: out.add((m.group(6), 0))
    return out
def split_ops(s):
    ops, depth, cur = [], 0, ""
    for ch in s:
        if ch == '[': depth += 1
        if ch == ']': depth -= 1
        if ch == ',' and depth == 0: ops.append(cur.strip()); cur = ""
        else: cur += ch
    if cur.strip(): ops.append(cur.strip())
    return ops
class I: pass
def parse(line):
    s = line.split(";")[0].strip()
    if not s or s.endswith(":") or s.startswith("."): return None
    p = s.split(None, 1)
    x = I(); x.mn = p[0]; rest = p[1] if len(p) > 1 else ""
    x.text = s
    ops = split_ops(rest)
    x.w = set(); x.r = set(); x.kind = "other"; x.srcC = set(); x.srcAB = set(); x.dpp = False; x.storedata = set(); x.passes = 0
    mn = x.mn
    x.states = 1
    if mn == "s_nop": x.states = int(ops[0], 0) + 1; return x
    if mn.startswith("v_mfma"):
        x.kind = "mfma"; x.w = regs_of(ops[0]); x.srcAB = regs_of(ops[1]) | regs_of(ops[2]); x.srcC = regs_of(ops[3]); x.r = x.srcAB | x.srcC
        x.passes = 8 if "32x32" in mn else 4
    elif mn.startswith("v_"):
        x.kind = "valu"
        if mn.startswith("v_cmp"):
            x.w = regs_of(ops[0]); x.r = set().union(*[regs_of(o) for o in ops[1:]])
            if mn.startswith("v_cmpx"): x.w.add(("exec", 0))
        elif mn.startswith("v_permlane"):
            x.w = regs_of(ops[0]) | regs_of(ops[1]); x.r = set(x.w); x.kind = "permlane"
        elif "_co_" in mn:
            x.w = regs_of(ops[0]) | regs_of(ops[1]); x.r = set().union(*[regs_of(o) for o in ops[2:]])
        else:
            x.w = regs_of(ops[0]); x.r = set().union(*[regs_of(o.split(" ")[0]) for o in ops[1:]]) if len(ops) > 1 else set()
            if mn.startswith(("v_fmac", "v_dot2c", "v_mac", "v_writelane")) : x.r |= x.w
            if mn.startswith("v_cndmask") and len(ops) == 3: x.r.add(("vcc", 0))
        x.dpp = ("quad_perm" in s or "row_" in s or "_dpp" in mn)
        x.trans = any(mn.startswith(t) for t in TRANS)
        x.rdlane = mn.startswith(("v_readlane", "v_readfirstlane"))
    elif mn.startswith("ds_"):
        x.kind = "mem"
        o = [q.split(" ")[0] for q in ops]
        if mn.startswith(("ds_read", "ds_bpermute", "ds_permute", "ds_swizzle")):
            x.w = regs_of(o[0]); x.r = set().union(*[regs_of(q) for q in o[1:]])
        else: x.r = set().union(*[regs_of(q) for q in o])
    elif mn.startswith(("buffer_", "global_")):
        x.kind = "mem"; x.vmem = True
        lds = re.search(r'\blds\b', s) is not None or "_lds_" in mn
        o = [q.split(" ")[0] for q in ops]
        if lds: x.r = set().union(*[regs_of(q) for q in o]) | {("m0", 0)}; x.ldsdma = True
        elif "load" in mn: x.w = regs_of(o[0]); x.r = set().union(*[regs_of(q) for q in o[1:]])
        else:
            x.r = set().union(*[regs_of(q) for q in o])
            if mn.endswith(("x3", "x4")): x.storedata = regs_of(o[0] if mn.startswith("buffer") else o[1])
    elif mn.startswith("s_"):
        x.kind = "salu"
        if mn.startswith(("s_cmp", "s_waitcnt", "s_barrier", "s_branch", "s_cbranch", "s_endpgm", "s_setprio", "s_sleep")):
            x.r = set().union(*[regs_of(q) for q in ops]) if ops else set()
        else:
            x.w = regs_of(ops[0]); x.r = set().union(*[regs_of(q) for q in ops[1:]]) if len(ops) > 1 else set()
            if "saveexec" in mn: x.w.add(("exec", 0))
    return x
def isv(S): return {r for r in S if r[0] in "va"}
def iss(S): return {r for r in S if r[0] in ("s", "vcc")}
def need(p, c):
    n = 0
    pv = p.kind in ("valu", "permlane")
    if pv:
        if c.kind == "mfma" and isv(p.w) & c.r: n = max(n, 2)
        if c.kind == "permlane" and isv(p.w) & c.r: n = max(n, 2)
        if c.kind == "valu" and c.dpp and isv(p.w) & c.r: n = max(n, 2)
        if c.kind == "valu" and getattr(c, "rdlane", False) and isv(p.w) & c.r: n = max(n, 1)
        if getattr(p, "trans", False) and c.kind in ("valu", "permlane", "mfma") and not getattr(c, "trans", False) and p.w & c.r: n = max(n, 1 if c.kind == "valu" else 2)
        if iss(p.w) & c.r:
            if c.kind == "mem": n = max(n, 5)
            elif c.kind in ("valu", "permlane"): n = max(n, 4 if c.mn.startswith(("v_readlane", "v_writelane")) else 2)
            elif c.kind == "salu": n = max(n, 1)
        if ("exec", 0) in p.w:
            if c.kind == "mfma" or c.kind == "permlane" or getattr(c, "rdlane", False): n = max(n, 4)
            if c.kind == "valu" and c.dpp: n = max(n, 5)
    if p.mn.startswith("v_dot"):
        if c.mn == p.mn:
            ops = split_ops(c.text.split(None, 1)[1])
            if p.w & (regs_of(ops[1]) | regs_of(ops[2])): n = max(n, 3)
        elif p.w & (c.r | c.w): n = max(n, 3)
    if p.kind == "salu" and ("m0", 0) in p.w and getattr(c, "ldsdma", False): n = max(n, 1)
    if p.kind == "mem" and p.storedata:
        if c.kind in ("valu", "permlane", "mfma") and p.storedata & c.w: n = max(n, 2)
        elif p.storedata & c.w: n = max(n, 1)
    if p.kind == "mfma":
        big = 12 if p.passes == 8 else 8
        if c.kind == "mfma":
            if p.w & c.srcAB: n = max(n, big)
            if p.w & c.srcC and not (p.w == c.srcC and p.passes == c.passes): n = max(n, 10 if p.passes == 8 else 6)
            if p.w & c.w and not (p.w == c.w and p.passes == c.passes): n = max(n, big)
        elif c.kind in ("valu", "permlane", "mem"):
            if p.w & (c.r | c.w): n = max(n, big)
            if c.kind != "mem" and p.srcC & c.w: n = max(n, 7 if p.passes == 8 else 3)
    return n
def pad(lines, verbose=False):
    out = []; hist = []
    added = 0
    for ln in lines:
        for sub in ln.split("\n"):
            x = parse(sub)
            if x is None:
                out.append(sub); continue
            req = 0; dist = 0
            for p in reversed(hist):
                if dist >= 20: break
                n = need(p, x)
                if n > dist: req = max(req, n - dist)
                dist += p.states
            if req > 0:
                added += 1
                k = req
                while k > 0:
                    m = min(k, 16)
                    nop = f"    s_nop {m-1}"
                    out.append(nop); hist.append(parse(nop)); k -= m
            out.append(sub); hist.append(x)
            if len(hist) > 64: hist = hist[-40:]
    return out, added
```

```python
import sys, struct
from gen_common import *
import hazard

PROFILE = "--prof" in sys.argv
def f32(x): return "0x%08x" % struct.unpack("<I", struct.pack("<f", x))[0]

Z_OFF   = 0x0010_0000
XN_OFF  = 0x0040_0000
X1_OFF  = 0x0070_0000
X2_OFF  = 0x00A0_0000
H_OFF   = 0x0100_0000
WP_OFF  = 0x0180_0000
WDP_OFF = 0x01C0_0000
WS_BYTES = 0x1000_0000
XBYTES = 2048 * 640 * 2
WBYTES = 640 * 1536 * 2

a = Asm()

def srd(n, lo, hi, size):
    a(f"s_mov_b32 s{n}, {lo}\ns_mov_b32 s{n+1}, {hi}\ns_mov_b32 s{n+2}, {size}\ns_mov_b32 s{n+3}, 0x20000")

def begin(name, nwg):
    a.kernel_begin(name)
    if PROFILE: stamp_begin(a)
    a(f"s_cmp_ge_u32 s2, {nwg}")
    a(f"s_cbranch_scc1 {name}_end")
def end(name, vgpr, agpr=0, vt=0, tidreg=None):
    if PROFILE:
        a(f"{name}_fin:")
        stamp_end(a, vt)
    else:
        a(f"{name}_fin:")
    a(f"{name}_end:")
    a.kernel_end(name, vgpr, agpr=agpr)

def bf16_round(dst, src):
    a(f"v_cvt_pk_bf16_f32 v{dst}, v{src}, v{src}")
    a(f"v_lshlrev_b32 v{dst}, 16, v{dst}")

def xsrc_srd(layer, n=12):
    if layer == 0:
        srd(n, "s6", "s7", XBYTES)
    else:
        a(f"s_add_u32 s{n}, s4, {X2_OFF}\ns_addc_u32 s{n+1}, s5, 0\ns_mov_b32 s{n+2}, {XBYTES}\ns_mov_b32 s{n+3}, 0x20000")

def ln_scalars(vS, vQ, vM, vR, t0):
    a(f"v_mul_f32 v{vS}, {f32(1.0/640)}, v{vS}")
    a(f"v_mul_f32 v{vQ}, {f32(1.0/640)}, v{vQ}")
    a(f"v_fma_f32 v{vQ}, -v{vS}, v{vS}, v{vQ}")
    a(f"v_max_f32 v{vQ}, 0, v{vQ}")
    bf16_round(vQ, vQ)
    a(f"v_add_f32 v{vQ}, {f32(1e-5)}, v{vQ}")
    bf16_round(vQ, vQ)
    a(f"v_sqrt_f32 v{vQ}, v{vQ}")
    bf16_round(vQ, vQ)
    a(f"v_rcp_f32 v{vR}, v{vQ}")
    if vM is not None: bf16_round(vM, vS)

def reduce_quads(v, t):
    a(f"v_mov_b32 v{t}, v{v}")
    a(f"v_permlane16_swap_b32 v{v}, v{t}")
    a(f"v_add_f32 v{v}, v{v}, v{t}")
    a(f"v_mov_b32 v{t}, v{v}")
    a(f"v_permlane32_swap_b32 v{v}, v{t}")
    a(f"v_add_f32 v{v}, v{v}, v{t}")

def gen_k1(layer):
    name = f"k1l{layer}_kernel"
    ST, GT, PP, MB, XS = 0, 256, 11776, 28160, 53760
    LDS = XS + 81920
    begin(name, 256)
    a("s_load_dwordx2 s[4:5], s[0:1], 88")
    if layer == 0:
        a("s_load_dwordx2 s[6:7], s[0:1], 0")
        a("s_load_dwordx4 s[16:19], s[0:1], 48")
    a("""s_and_b32 s28, s2, 7
    s_lshr_b32 s29, s2, 3
    s_lshr_b32 s30, s29, 3
    s_lshl_b32 s30, s30, 3
    s_add_u32 s30, s30, s28
    s_and_b32 s31, s29, 7
    v_lshrrev_b32 v1, 6, v0
    v_and_b32 v2, 63, v0
    v_readfirstlane_b32 s32, v1""")
    a("""v_lshrrev_b32 v4, 4, v2
    v_sub_u32 v5, 0, v4
    v_xor_b32 v5, v5, v2
    v_and_b32 v5, 3, v5
    v_lshlrev_b32 v5, 4, v5
    v_lshrrev_b32 v6, 2, v2
    v_mul_u32_u24 v3, 40960, v6
    v_add_u32 v3, v3, v5""")
    a("s_mul_i32 s33, s30, 1280\ns_mul_i32 s34, s32, 655360\ns_add_u32 s33, s33, s34")
    a(f"s_mul_i32 s35, s32, 20480\ns_add_u32 s35, s35, {XS}")
    a("s_waitcnt lgkmcnt(0)")
    srd(8, "s4", "s5", WS_BYTES)
    xsrc_srd(layer)
    for k in range(20):
        a(f"s_add_u32 m0, s35, {960*k}")
        a(f"buffer_load_dwordx4 v3, s[12:15], s33 offen offset:{64*k} lds")
    NPP = 0
    if layer == 0:
        NPP = 4
        srd(20, "s16", "s17", WBYTES); srd(24, "s18", "s19", WBYTES)
        a("""s_lshl_b32 s36, s2, 2
        s_add_u32 s36, s36, s32
        s_min_u32 s39, s36, 959
        s_mul_i32 s37, s39, 5462
        s_lshr_b32 s37, s37, 16
        s_mul_i32 s38, s37, 12
        s_sub_u32 s38, s39, s38
        v_mul_u32_u24 v7, 3072, v4
        v_and_b32 v8, 15, v2
        v_lshlrev_b32 v8, 4, v8
        v_add_u32 v7, v7, v8
        s_mul_i32 s40, s37, 24576
        s_lshl_b32 s41, s38, 8
        s_add_u32 s40, s40, s41
        s_add_u32 s41, s40, 12288
        s_lshl_b32 s42, s32, 12""")
        for i in range(4):
            a(f"s_add_u32 m0, s42, {PP + 1024*i}")
            a(f"buffer_load_dwordx4 v7, s[{20 if i < 2 else 24}:{23 if i < 2 else 27}], s{40 + (i & 1)} offen lds")
    a("""v_and_b32 v8, 15, v2
    v_lshrrev_b32 v20, 2, v8          ; q'
    v_bfe_u32 v21, v8, 1, 1           ; b
    v_and_b32 v22, 1, v8              ; ri""")
    a("s_mul_i32 s43, s31, 40\ns_add_u32 s43, s43, 1")
    a("v_lshlrev_b32 v23, 3, v20\nv_add_u32 v23, v23, v21\nv_add_u32 v23, s43, v23")
    a("v_lshlrev_b32 v24, 1, v20\nv_add_u32 v24, v24, v21\nv_add_u32 v24, s43, v24\nv_add_u32 v24, 32, v24")
    a("v_cvt_f32_u32 v23, v23\nv_cvt_f32_u32 v24, v24")
    for t in range(4):
        a(f"v_add_f32 v25, {f32(2.0*t)}, v23")
        a(f"v_mul_f32 v{9+t}, {f32(1.0/640)}, v25")
    a(f"v_mul_f32 v13, {f32(1.0/640)}, v24")
    a("v_cvt_f32_u32 v14, v22\nv_mul_f32 v14, 0.25, v14" if False else f"v_cvt_f32_u32 v14, v22\nv_mul_f32 v14, {f32(0.25)}, v14")
    a("v_lshlrev_b32 v25, 3, v4\nv_lshl_add_u32 v25, v1, 1, v25\nv_cvt_f32_u32 v25, v25")
    for k in range(5):
        a(f"v_add_f32 v{15+k}, {f32(32.0*k)}, v25")
    a(f"""v_lshlrev_b32 v26, 31, v21
    v_xor_b32 v232, {f32(-1.0)}, v26
    v_or_b32 v26, v21, v22
    v_lshlrev_b32 v26, 31, v26
    v_xor_b32 v233, 1.0, v26
    v_xor_b32 v234, {f32(-1.0)}, v26
    v_lshlrev_b32 v26, 31, v20
    v_xor_b32 v235, v233, v26""")
    a(f"v_lshlrev_b32 v26, 4, v2\nv_lshl_add_u32 v27, v1, 2, v26\nv_add_u32 v27, {MB}, v27")
    for t in range(5):
        for k in range(5):
            r = 28 + ((t*5+k) % 4) * 3
            a(f"v_fma_f32 v{r}, v{9+t}, v{15+k}, v14")
            a(f"v_add_f32 v{r+1}, v{r}, v{9+t}")
            a(f"v_cos_f32 v{r}, v{r}")
            a(f"v_cos_f32 v{r+1}, v{r+1}")
            a(f"v_cvt_pk_bf16_f32 v{r+2}, v{r}, v{r+1}")
            a(f"ds_write_b32 v27, v{r+2} offset:{(t*5+k)*1024}")
    a(f"v_lshl_add_u32 v28, v1, 4, v8\nv_cvt_f32_u32 v28, v28\nv_mul_f32 v28, {f32(1.0/64)}, v28")
    a("v_lshlrev_b32 v29, 3, v4\nv_cvt_f32_u32 v29, v29\nv_mul_f32 v29, v29, v28")
    for p in range(2):
        for jj in range(4):
            n = 32*p + 2*jj
            a(f"s_mov_b32 s44, {f32(float(n))}")
            a(f"v_fma_f32 v30, v28, s44, v29")
            a(f"v_add_f32 v31, v30, v28")
            a(f"v_cos_f32 v32, v30\nv_cos_f32 v33, v31\nv_sin_f32 v34, v30\nv_sin_f32 v35, v31")
            a(f"v_cvt_pk_bf16_f32 v{200+4*p+jj}, v32, v33")
            a(f"v_cvt_pk_bf16_f32 v{208+4*p+jj}, -v34, -v35")
    a("s_waitcnt lgkmcnt(0)\ns_barrier")
    a(f"v_add_u32 v27, {MB}, v26")
    for f in range(25):
        a(f"ds_read_b128 v[{100+4*f}:{103+4*f}], v27 offset:{f*1024}")
    a("""v_sub_u32 v29, 0, v20
    v_xor_b32 v29, v29, v4
    v_and_b32 v29, 3, v29
    v_lshlrev_b32 v29, 4, v29
    v_lshl_add_u32 v28, v8, 6, v29
    v_add_u32 v28, s35, v28
    v_mov_b32 v236, 0
    v_mov_b32 v237, 0
    v_mov_b32 v238, 0x3f803f80""")
    a("v_mov_b32 v3, v28\nv_mov_b32 v5, v26")
    ACC = lambda q, t: 20 + (q*5+t)*4
    AF = lambda k: 216 + (k % 4) * 4
    a("s_waitcnt lgkmcnt(0)")
    def xread(k):
        a(f"s_waitcnt vmcnt({19 - k + NPP})")
        a(f"ds_read_b128 v[{AF(k)}:{AF(k)+3}], v3 offset:{1024*k}")
    xread(0); xread(1)
    for k in range(20):
        q, kk = divmod(k, 5)
        if k + 2 < 20:
            xread(k + 2)
            a("s_waitcnt lgkmcnt(2)")
        else:
            a(f"s_waitcnt lgkmcnt({19 - k})")
        for t in range(5):
            c = f"v[{ACC(q,t)}:{ACC(q,t)+3}]"
            a(f"v_mfma_f32_16x16x32_bf16 {c}, v[{AF(k)}:{AF(k)+3}], v[{100+4*(t*5+kk)}:{103+4*(t*5+kk)}], {'0' if kk == 0 else c}")
            if t < 4:
                a(f"v_dot2_f32_bf16 v236, v{AF(k)+t}, v238, v236")
                a(f"v_dot2_f32_bf16 v237, v{AF(k)+t}, v{AF(k)+t}, v237")
    reduce_quads(236, 239); reduce_quads(237, 239)
    ln_scalars(236, 237, None, 240, 239)
    a(f"s_lshl_b32 s44, s32, 6\nv_lshlrev_b32 v241, 2, v8\nv_add_u32 v241, s44, v241")
    a(f"ds_write_b32 v241, v240 offset:{ST}")
    a(f"v_lshlrev_b32 v241, 4, v4\nv_add_u32 v241, s44, v241")
    a("s_waitcnt lgkmcnt(0)")
    a(f"ds_read_b128 v[244:247], v241 offset:{ST}")
    for t in range(5):
        for i in range(4):
            a(f"v_fmac_f32 v{ACC(0,t)+i}, v232, v{ACC(2,t)+i}")
            a(f"v_fmac_f32 v{ACC(1,t)+i}, v232, v{ACC(3,t)+i}")
    for t in range(5):
        sg = 235 if t == 4 else (233 if t % 2 == 0 else 234)
        for i in range(4):
            a(f"v_fmac_f32_dpp v{ACC(0,t)+i}, v{ACC(1,t)+i}, v{sg} quad_perm:[1,0,2,3] row_mask:0xf bank_mask:0xf")
    a("s_waitcnt lgkmcnt(0)")
    a(f"v_mul_u32_u24 v6, 144, v8\nv_lshlrev_b32 v7, 3, v4\nv_add_u32 v6, v6, v7\ns_lshl_b32 s44, s32, 5\nv_add_u32 v9, s44, v6")
    for t in range(5):
        for i in range(4):
            a(f"v_mul_f32 v{ACC(0,t)+i}, v{ACC(0,t)+i}, v{244+i}")
        a(f"v_cvt_pk_bf16_f32 v{ACC(1,t)}, v{ACC(0,t)}, v{ACC(0,t)+1}")
        a(f"v_cvt_pk_bf16_f32 v{ACC(1,t)+1}, v{ACC(0,t)+2}, v{ACC(0,t)+3}")
        a(f"ds_write_b64 v9, v[{ACC(1,t)}:{ACC(1,t)+1}] offset:{GT + t*16*144}")
    a(f"v_add_u32 v6, v6, v7")
    a("s_waitcnt lgkmcnt(0)\ns_barrier")
    for t in range(5):
        for p in range(2):
            r = 100 + (t*2+p)*4
            a(f"ds_read_b128 v[{r}:{r+3}], v6 offset:{GT + t*16*144 + 64*p}")
    a(f"v_lshl_add_u32 v10, v1, 4, v8\nv_mul_u32_u24 v10, 40960, v10\nv_lshl_add_u32 v11, v4, 2, v10\nv_lshl_add_u32 v10, v4, 4, v10")
    a(f"s_mul_i32 s44, s30, 1280\ns_mul_i32 s45, s31, 80\ns_add_u32 s44, s44, s45\ns_add_u32 s44, s44, {Z_OFF}")
    T1 = lambda t: 20 + t*8
    T2 = lambda t: 24 + t*8
    for t in range(5):
        a(f"s_waitcnt lgkmcnt({8 - 2*t})")
        for p in range(2):
            r = 100 + (t*2+p)*4
            a(f"v_mfma_f32_16x16x32_bf16 v[{T1(t)}:{T1(t)+3}], v[{r}:{r+3}], v[{200+4*p}:{203+4*p}], {'0' if p == 0 else f'v[{T1(t)}:{T1(t)+3}]'}")
            a(f"v_mfma_f32_16x16x32_bf16 v[{T2(t)}:{T2(t)+3}], v[{r}:{r+3}], v[{208+4*p}:{211+4*p}], {'0' if p == 0 else f'v[{T2(t)}:{T2(t)+3}]'}")
    for t in range(5):
        a(f"v_sub_f32 v76, v{T1(t)}, v{T2(t)+1}")
        a(f"v_sub_f32 v77, v{T1(t)+2}, v{T2(t)+3}")
        a(f"v_add_f32 v78, v{T2(t)}, v{T1(t)+1}")
        a(f"v_add_f32 v79, v{T2(t)+2}, v{T1(t)+3}")
        a(f"v_cvt_pk_bf16_f32 v{60+t}, v76, v77")
        a(f"v_cvt_pk_bf16_f32 v{68+t}, v78, v79")
    a("buffer_store_dwordx4 v[60:63], v10, s[8:11], s44 offen")
    a("buffer_store_dwordx4 v[68:71], v10, s[8:11], s44 offen offset:640")
    a("buffer_store_dword v64, v11, s[8:11], s44 offen offset:64")
    a("buffer_store_dword v72, v11, s[8:11], s44 offen offset:704")
    if layer == 0:
        a("s_cmp_ge_u32 s36, 960")
        a(f"s_cbranch_scc1 {name}_fin")
        a(f"""v_and_b32 v13, 3, v2
        v_bfe_u32 v14, v2, 2, 2
        v_lshrrev_b32 v15, 1, v13
        v_lshlrev_b32 v12, 11, v15
        v_lshl_add_u32 v12, v14, 8, v12
        v_and_b32 v15, 1, v13
        v_lshl_add_u32 v12, v15, 4, v12
        v_lshrrev_b32 v16, 5, v2
        v_lshl_add_u32 v12, v16, 5, v12
        v_and_b32 v15, 1, v4
        v_lshl_add_u32 v12, v15, 3, v12
        v_add_u32 v12, s42, v12
        s_waitcnt vmcnt(4)""")
        for pi in range(4):
            for p in range(2):
                a(f"ds_read_b64_tr_b16 v[{100+pi*4+2*p}:{101+pi*4+2*p}], v12 offset:{PP + p*1024 + pi*64}")
        a(f"""s_lshr_b32 s45, s37, 1
        s_mul_i32 s45, s45, 6144
        s_and_b32 s46, s37, 1
        s_lshl_b32 s46, s46, 9
        s_add_u32 s45, s45, s46
        s_add_u32 s45, s45, {WP_OFF}
        s_lshl_b32 s46, s38, 3
        v_add_u32 v16, s46, v16
        v_and_b32 v17, 31, v2
        v_lshlrev_b32 v17, 4, v17
        s_mov_b32 s47, {245760 - 6*1024}""")
        for pi in range(4):
            a(f"v_add_u32 v18, {2*pi}, v16")
            a("v_mul_u32_u24 v19, 43, v18\nv_lshrrev_b32 v19, 8, v19")
            a("v_mul_lo_u32 v19, v19, s47")
            a("v_lshl_add_u32 v19, v18, 10, v19")
            a(f"v_add_u32 v{116+pi}, v19, v17")
        a("s_waitcnt lgkmcnt(0)")
        for pi in range(4):
            a(f"buffer_store_dwordx4 v[{100+pi*4}:{103+pi*4}], v{116+pi}, s[8:11], s45 offen")
    end(name, 248, vt=120)
    return name, LDS

def gen_s2(layer):
    name = f"s2l{layer}_kernel"
    ST, XS, ZS = 0, 1024, 21504
    LDS = ZS + 81920
    nwg = 176 if layer == 0 else 128
    begin(name, nwg)
    a("s_load_dwordx2 s[4:5], s[0:1], 88")
    if layer == 0:
        a("s_load_dwordx2 s[6:7], s[0:1], 0")
        a("s_load_dwordx2 s[16:17], s[0:1], 64")
    a("""v_lshrrev_b32 v1, 6, v0
    v_and_b32 v2, 63, v0
    v_readfirstlane_b32 s32, v1
    v_lshrrev_b32 v4, 4, v2
    v_and_b32 v8, 15, v2""")
    if layer == 0:
        a("s_cmp_ge_u32 s2, 128")
        a(f"s_cbranch_scc1 {name}_pp")
    a("""s_and_b32 s28, s2, 7
    s_lshr_b32 s29, s2, 5
    s_lshl_b32 s29, s29, 3
    s_add_u32 s28, s28, s29           ; pi
    s_sub_u32 s30, 64, s28
    s_cmp_eq_u32 s28, 0
    s_cselect_b32 s30, 32, s30
    s_bitcmp1_b32 s2, 4
    s_cselect_b32 s30, s30, s28       ; k1
    s_sub_u32 s31, 64, s30
    s_and_b32 s31, s31, 63            ; k1'
    s_bfe_u32 s29, s2, 0x10003        ; half
    s_and_b32 s28, s30, 31
    s_lshl_b32 s28, s28, 1
    s_lshr_b32 s33, s30, 5
    s_add_u32 s28, s28, s33           ; kappa""")
    for i in range(5):
        a(f"""v_add_u32 v20, {64*i}, v2
        v_mul_u32_u24 v21, 1639, v20
        v_lshrrev_b32 v21, 16, v21
        v_mul_u32_u24 v22, 40, v21
        v_sub_u32 v22, v20, v22
        v_lshlrev_b32 v23, 1, v21
        v_and_b32 v23, 4, v23
        v_xor_b32 v22, v22, v23
        v_mul_u32_u24 v21, 640, v21
        v_lshl_add_u32 v{10+i}, v22, 4, v21""")
    a(f"""s_cmp_lt_u32 s32, 2
    s_cselect_b32 s34, s30, s31
    s_cselect_b32 s35, -2, 0
    s_mul_i32 s34, s34, 40960
    s_add_u32 s34, s34, s35
    s_add_u32 s34, s34, {Z_OFF}
    s_and_b32 s35, s32, 1
    s_mul_i32 s35, s35, 20480
    s_add_u32 s34, s34, s35
    s_mul_i32 s35, s32, 20480""")
    a("""v_sub_u32 v5, 0, v4
    v_xor_b32 v5, v5, v2
    v_and_b32 v5, 3, v5
    v_lshlrev_b32 v5, 4, v5
    v_lshrrev_b32 v6, 2, v2
    v_mul_u32_u24 v3, 81920, v6
    v_add_u32 v3, v3, v5
    s_lshl_b32 s36, s29, 10
    s_add_u32 s36, s36, s30
    s_mul_i32 s36, s36, 1280
    s_mul_i32 s37, s32, 320
    s_add_u32 s36, s36, s37
    s_mul_i32 s37, s32, 5120""")
    a("s_waitcnt lgkmcnt(0)")
    srd(8, "s4", "s5", WS_BYTES)
    xsrc_srd(layer)
    for P in range(5):
        a(f"s_add_u32 m0, s37, {XS + 960*P}")
        a(f"buffer_load_dwordx4 v3, s[12:15], s36 offen offset:{64*P} lds")
    for g in range(4):
        if g: a(f"s_add_u32 s34, s34, 5120")
        for i in range(5):
            a(f"s_add_u32 m0, s35, {ZS + (5*g+i)*1024}")
            a(f"buffer_load_dwordx4 v{10+i}, s[8:11], s34 offen lds")
    a(f"""s_lshl_b32 s38, s29, 10
    s_add_u32 s38, s38, s30
    v_lshlrev_b32 v28, 6, v8
    v_add_u32 v28, s38, v28
    v_cvt_f32_u32 v28, v28
    v_mul_f32 v28, {f32(1.0/2048)}, v28
    v_lshlrev_b32 v29, 2, v4
    v_cvt_f32_u32 v29, v29
    v_mul_f32 v29, v29, v28
    s_cmp_lt_u32 s32, 2
    s_cselect_b32 s39, 0, 0x80000000""")
    for p in range(2):
        for jj in range(4):
            a(f"s_mov_b32 s44, {f32(float(16*p + jj))}")
            a(f"v_fma_f32 v30, v28, s44, v29")
            a(f"v_cos_f32 v31, v30\nv_sin_f32 v32, v30")
            a(f"v_xor_b32 v32, s39, v32")
            a(f"v_cvt_pk_bf16_f32 v{20+4*p+jj}, v31, v32")
    a(f"""v_lshrrev_b32 v29, 2, v8
    v_sub_u32 v29, 0, v29
    v_xor_b32 v29, v29, v4
    v_and_b32 v29, 3, v29
    v_lshlrev_b32 v29, 4, v29
    v_lshl_add_u32 v9, v8, 6, v29
    v_add_u32 v9, s37, v9""")
    a("""v_bfe_u32 v15, v2, 2, 2
    v_and_b32 v16, 3, v2
    v_lshl_add_u32 v17, v4, 3, v15
    v_mul_u32_u24 v17, 640, v17
    v_lshrrev_b32 v18, 1, v15
    v_lshlrev_b32 v18, 6, v18         ; z*64
    v_lshlrev_b32 v16, 4, v16         ; c*16""")
    a("s_waitcnt vmcnt(20)")
    XF = lambda P: 100 + 4*P
    for P in range(5):
        a(f"ds_read_b128 v[{XF(P)}:{XF(P)+3}], v9 offset:{XS + 1024*P}")
    ACC = lambda P, h: 40 + (P*2+h)*4
    a("s_cmp_ge_u32 s32, 2")
    a(f"s_cbranch_scc1 {name}_right")
    for right in (0, 1):
        if right:
            a(f"{name}_right:")
            a(f"""s_mul_i32 s40, s32, 320
            s_sub_u32 s40, {ZS + 41968}, s40
            v_sub_u32 v19, v17, v16
            v_add_u32 v19, s40, v19
            s_cmp_eq_u32 s32, 2""")
        else:
            a(f"""s_mul_i32 s40, s32, 320
            s_add_u32 s40, s40, {ZS}
            v_add_u32 v19, v17, v16
            v_add_u32 v19, s40, v19
            s_cmp_eq_u32 s32, 1""")
        a("""s_cselect_b32 s41, -1, 1
        v_mul_i32_i24 v18, s41, v18
        v_add_u32 v30, v19, v18
        v_sub_u32 v31, v19, v18
        s_waitcnt lgkmcnt(0)""")
        for P in range(5):
            for dw in range(4):
                h, lo = dw >> 1, (dw & 1) * 2
                i0, i1 = (3 - lo, 2 - lo) if right else (lo, lo + 1)
                a(f"v_lshlrev_b32 v{ACC(P,h)+i0}, 16, v{XF(P)+dw}")
                a(f"v_and_b32 v{ACC(P,h)+i1}, 0xffff0000, v{XF(P)+dw}")
        if not right: a(f"v_mov_b32 v32, v{ACC(0,0)}")
        a("s_waitcnt vmcnt(0)\ns_barrier")
        AF = lambda P, h, p: 120 + (P % 3) * 16 + (h*2+p)*4
        def trreads(P):
            for h in range(2):
                for p in range(2):
                    for s in range(2):
                        off = (32*p + 4*s)*640 + (((4-P)*64 + (1-h)*8) if right else (P*64 + h*8))
                        r = AF(P,h,p) + 2*s
                        a(f"ds_read_b64_tr_b16 v[{r}:{r+1}], v{30 + (P & 1)} offset:{off}")
        trreads(0)
        for P in range(5):
            if P + 1 < 5:
                trreads(P + 1); a("s_waitcnt lgkmcnt(8)")
            else: a("s_waitcnt lgkmcnt(0)")
            for h in range(2):
                for p in range(2):
                    c = f"v[{ACC(P,h)}:{ACC(P,h)+3}]"
                    a(f"v_mfma_f32_16x16x32_bf16 {c}, v[{AF(P,h,p)}:{AF(P,h,p)+3}], v[{20+4*p}:{23+4*p}], {c}")
        if not right:
            a("s_cmp_eq_u32 s32, 0\ns_cselect_b32 s42, 0xffff, 0\ns_mov_b32 s43, 0")
            a(f"v_cndmask_b32 v{ACC(0,0)}, v{ACC(0,0)}, v32, s[42:43]")
        a("v_mov_b32 v33, 0\nv_mov_b32 v34, 0\nv_mov_b32 v35, 0x3f803f80")
        order = lambda P, dw: ((ACC(P, dw >> 1) + 3 - (dw & 1)*2, ACC(P, dw >> 1) + 2 - (dw & 1)*2) if right else (ACC(P, dw >> 1) + (dw & 1)*2, ACC(P, dw >> 1) + (dw & 1)*2 + 1))
        for P in range(5):
            for dw in range(4):
                r0, r1 = order(P, dw)
                a(f"v_cvt_pk_bf16_f32 v{XF(P)+dw}, v{r0}, v{r1}")
            for dw in range(4):
                a(f"v_dot2_f32_bf16 v33, v{XF(P)+dw}, v35, v33")
                a(f"v_dot2_f32_bf16 v34, v{XF(P)+dw}, v{XF(P)+dw}, v34")
        a(f"""s_lshl_b32 s44, s28, 1
        s_add_u32 s44, s44, s29
        s_mul_i32 s44, s44, 20480
        s_add_u32 s44, s44, s37
        s_add_u32 s44, s44, {X1_OFF}
        s_add_u32 s45, s44, 4096
        v_lshlrev_b32 v36, 4, v2""")
        for P in range(5):
            a(f"buffer_store_dwordx4 v[{XF(P)}:{XF(P)+3}], v36, s[8:11], s{44 if P < 4 else 45} offen offset:{1024*(P % 4)}")
        reduce_quads(33, 37); reduce_quads(34, 37)
        a(f"v_lshlrev_b32 v37, 5, v8\nv_lshl_add_u32 v38, v1, 3, v37")
        a(f"v_mov_b32 v28, v33\nv_mov_b32 v29, v34")
        a(f"ds_write_b64 v38, v[28:29] offset:{ST}")
        a("s_waitcnt lgkmcnt(0)\ns_barrier")
        a(f"ds_read_b128 v[120:123], v37 offset:{ST}\nds_read_b128 v[124:127], v37 offset:{ST+16}")
        a(f"""v_lshrrev_b32 v38, 1, v4
        v_lshlrev_b32 v38, 10, v38
        v_and_b32 v39, 1, v4
        v_lshl_add_u32 v38, v39, 9, v38
        v_lshl_add_u32 v38, v8, 4, v38
        s_mul_i32 s44, s28, 40960
        s_lshl_b32 s45, s37, 1
        s_add_u32 s44, s44, s45
        s_lshl_b32 s45, s29, 8
        s_add_u32 s44, s44, s45
        s_add_u32 s44, s44, {XN_OFF}
        s_waitcnt lgkmcnt(0)
        v_add_f32 v33, v120, v122
        v_add_f32 v34, v121, v123
        v_add_f32 v28, v124, v126
        v_add_f32 v29, v125, v127
        v_add_f32 v33, v33, v28
        v_add_f32 v34, v34, v29""")
        ln_scalars(33, 34, 28, 29, 37)
        a("v_mul_f32 v28, v28, v29")
        for P in range(5):
            for h in range(2):
                for i in range(4):
                    a(f"v_fma_f32 v{ACC(P,h)+i}, v{ACC(P,h)+i}, v29, -v28")
            for dw in range(4):
                r0, r1 = order(P, dw)
                a(f"v_cvt_pk_bf16_f32 v{128+4*P+dw}, v{r0}, v{r1}")
            if P in (2, 4): a("s_add_u32 s44, s44, 4096")
            a(f"buffer_store_dwordx4 v[{128+4*P}:{131+4*P}], v38, s[8:11], s44 offen offset:{2048*(P % 2)}")
        a(f"s_branch {name}_fin")
    if layer == 0:
        a(f"{name}_pp:")
        a(f"""s_sub_u32 s28, s2, 128
        s_lshl_b32 s28, s28, 2
        s_add_u32 s28, s28, s32
        s_mul_i32 s29, s28, 10240
        s_mul_i32 s30, s32, 10240
        v_lshlrev_b32 v3, 4, v2
        s_waitcnt lgkmcnt(0)""")
        srd(8, "s4", "s5", WS_BYTES)
        srd(20, "s16", "s17", WBYTES)
        for i in range(10):
            if i in (4, 8): a("s_add_u32 s29, s29, 4096")
            a(f"s_add_u32 m0, s30, {(i // 4) * 4096}")
            a(f"buffer_load_dwordx4 v3, s[20:23], s29 offen offset:{1024*(i % 4)} lds")
        a(f"""v_bfe_u32 v5, v2, 2, 2
        v_and_b32 v6, 3, v2
        v_mul_u32_u24 v5, 1280, v5
        v_add_u32 v5, s30, v5
        s_lshr_b32 s31, s28, 2
        s_mul_i32 s31, s31, 5120
        s_and_b32 s33, s28, 3
        s_lshl_b32 s33, s33, 8
        s_add_u32 s31, s31, s33
        s_add_u32 s31, s31, {WDP_OFF}
        s_mov_b32 s33, {245760 - 5*1024}
        v_lshlrev_b32 v7, 4, v8""")
        for pi in range(10):
            a(f"""v_add_u32 v10, {4*pi}, v4
            v_mul_u32_u24 v11, 52, v10
            v_lshrrev_b32 v11, 8, v11
            v_mul_u32_u24 v12, 5, v11
            v_sub_u32 v12, v10, v12
            v_lshrrev_b32 v13, 1, v12
            v_lshlrev_b32 v13, 3, v13
            v_and_b32 v14, 1, v12
            v_add_u32 v13, v13, v14
            v_lshl_add_u32 v14, v6, 1, v13
            v_add_u32 v15, v6, v13
            v_cmp_gt_u32 vcc, 4, v12
            v_cndmask_b32 v14, v15, v14, vcc
            v_mul_u32_u24 v15, 20, v11
            v_add_u32 v14, v14, v15
            v_lshl_add_u32 v{20+pi}, v14, 3, v5
            v_mul_lo_u32 v11, v11, s33
            v_lshl_add_u32 v11, v10, 10, v11
            v_add_u32 v{30+pi}, v11, v7""")
        a("s_waitcnt vmcnt(0)")
        for pi in range(10):
            for p in range(2):
                a(f"ds_read_b64_tr_b16 v[{40+pi*4+2*p}:{41+pi*4+2*p}], v{20+pi} offset:{p*5120}")
            if pi % 5 == 4: a("s_waitcnt lgkmcnt(0)")
        for pi in range(10):
            a(f"buffer_store_dwordx4 v[{40+pi*4}:{43+pi*4}], v{30+pi}, s[8:11], s31 offen")
    end(name, 168, vt=160)
    return name, LDS, nwg

def gen_glu1():
    name = "glu1_kernel"
    SLOT = 24576; NS = 6
    LDS = SLOT * NS
    begin(name, 256)
    a("s_load_dwordx2 s[4:5], s[0:1], 88")
    a("""s_and_b32 s28, s2, 7
    s_lshr_b32 s29, s2, 3
    s_lshr_b32 s30, s28, 2
    s_lshl_b32 s30, s30, 3
    s_and_b32 s33, s29, 7
    s_add_u32 s30, s30, s33           ; rb
    s_and_b32 s31, s28, 3
    s_lshl_b32 s31, s31, 2
    s_lshr_b32 s33, s29, 3
    s_add_u32 s31, s31, s33           ; cb
    v_lshrrev_b32 v1, 6, v0
    v_and_b32 v2, 63, v0
    v_readfirstlane_b32 s32, v1
    v_lshlrev_b32 v3, 4, v2""")
    a(f"""s_lshl_b32 s33, s30, 2
    s_add_u32 s33, s33, s32           ; T
    s_mul_i32 s34, s33, 40960
    s_add_u32 s34, s34, {XN_OFF}
    s_mul_i32 s35, s31, 245760
    s_mul_i32 s36, s32, 6144
    s_add_u32 s35, s35, s36
    s_add_u32 s35, s35, {WP_OFF}
    v_add_u32 v4, {2*SLOT}, v3
    v_add_u32 v5, {4*SLOT}, v3
    s_waitcnt lgkmcnt(0)""")
    srd(8, "s4", "s5", WS_BYTES)
    def issue_chunk(c):
        a(f"s_add_u32 s37, s35, {c*SLOT}")
        a(f"s_add_u32 s38, s35, {c*SLOT + 4096}")
        for i in range(6):
            a(f"s_add_u32 m0, s36, {(c % NS)*SLOT + (4096 if i >= 4 else 0)}") if i in (0, 4) else None
            a(f"buffer_load_dwordx4 v3, s[8:11], s{37 if i < 4 else 38} offen offset:{1024*(i % 4)} lds")
        a(f"s_add_u32 s39, s34, {c*4096}")
        for k in range(4):
            r = (4*c + k) * 4
            a(f"buffer_load_dwordx4 a[{r}:{r+3}], v3, s[8:11], s39 offen offset:{1024*k}")
    for c in range(6): issue_chunk(c)
    ACC = lambda m: 16 + 16*m
    AF = lambda k, m: 112 + (k & 1)*24 + 4*m
    def aread(k, m):
        c, kl = divmod(k, 4)
        slot = c % NS
        a(f"ds_read_b128 v[{AF(k,m)}:{AF(k,m)+3}], v{3 + slot // 2} offset:{(slot & 1)*SLOT + (kl*6+m)*1024}")
    a(f"""v_bfe_u32 v6, v2, 4, 1
    v_mul_u32_u24 v6, 49152, v6
    v_lshrrev_b32 v7, 5, v2
    v_lshl_add_u32 v6, v7, 8, v6
    v_and_b32 v7, 15, v2
    v_lshl_add_u32 v6, v7, 4, v6
    s_mul_i32 s40, s33, 98304
    s_mul_i32 s41, s31, 3072
    s_add_u32 s40, s40, s41
    s_add_u32 s40, s40, {H_OFF}
    s_mov_b32 s42, {f32(-1.4426950408889634)}""")
    a("s_waitcnt vmcnt(50)\ns_barrier")
    for m in range(6): aread(0, m)
    issued = 5
    for k in range(40):
        c, kl = divmod(k, 4)
        if kl == 3 and c < 9:
            a(f"s_waitcnt vmcnt({(issued - (c+1))*10})\ns_barrier")
            if c >= 1 and c + 5 <= 9:
                issue_chunk(c + 5); issued = c + 5
        for m in range(6):
            a(f"s_waitcnt lgkmcnt({5 if k < 39 else 5 - m})")
            cc = f"v[{ACC(m)}:{ACC(m)+15}]"
            a(f"v_mfma_f32_32x32x16_bf16 {cc}, v[{AF(k,m)}:{AF(k,m)+3}], a[{4*k}:{4*k+3}], {'0' if k == 0 else cc}")
            if k < 39: aread(k + 1, m)
    for m in range(6):
        A = ACC(m)
        gi = [0,1,2,3,8,9,10,11]; ui = [4,5,6,7,12,13,14,15]
        for j in range(8): a(f"v_mul_f32 v{A+gi[j]}, s42, v{A+gi[j]}")
        for j in range(8): a(f"v_exp_f32 v{A+gi[j]}, v{A+gi[j]}")
        for j in range(8): a(f"v_add_f32 v{A+gi[j]}, 1.0, v{A+gi[j]}")
        for j in range(8): a(f"v_rcp_f32 v{A+gi[j]}, v{A+gi[j]}")
        for j in range(8): a(f"v_mul_f32 v{A+gi[j]}, v{A+gi[j]}, v{A+ui[j]}")
        o = 112 + 4*m
        for j in range(4): a(f"v_cvt_pk_bf16_f32 v{o+j}, v{A+gi[2*j]}, v{A+gi[2*j+1]}")
        a(f"buffer_store_dwordx4 v[{o}:{o+3}], v6, s[8:11], s40 offen offset:{(m >> 1)*1024 + (m & 1)*512}")
    end(name, 160, agpr=160, vt=8)
    return name, LDS

def gen_glu2(layer):
    name = f"glu2l{layer}_kernel"
    LDS = 81920
    begin(name, 256)
    a("s_load_dwordx2 s[4:5], s[0:1], 88")
    if layer == 1: a("s_load_dwordx2 s[6:7], s[0:1], 72")
    a("""s_and_b32 s28, s2, 7
    s_lshr_b32 s29, s2, 3
    s_lshr_b32 s30, s29, 3
    s_lshl_b32 s30, s30, 3
    s_add_u32 s30, s30, s28           ; theta
    s_and_b32 s31, s29, 7             ; cb
    v_lshrrev_b32 v1, 6, v0
    v_and_b32 v2, 63, v0
    v_readfirstlane_b32 s32, v1
    v_lshlrev_b32 v3, 4, v2
    v_lshrrev_b32 v4, 4, v2
    v_and_b32 v8, 15, v2""")
    for n in range(4):
        a(f"""s_add_u32 s33, s32, {n}
        s_and_b32 s33, s33, 3
        s_lshl_b32 s34, s30, 2
        s_add_u32 s34, s34, s33
        s_mul_i32 s34, s34, 49152
        s_mul_i32 s35, s32, 12288
        s_add_u32 s34, s34, s35
        s_add_u32 s{40+n}, s34, {H_OFF}""")
    a(f"""s_mul_i32 s44, s31, 245760
    s_mul_i32 s35, s32, 61440
    s_add_u32 s44, s44, s35
    s_add_u32 s44, s44, {WDP_OFF}
    s_lshl_b32 s34, s30, 2
    s_add_u32 s34, s34, s32
    s_mul_i32 s34, s34, 20480
    s_mul_i32 s35, s31, 2560
    s_add_u32 s34, s34, s35
    s_add_u32 s45, s34, {X1_OFF}
    v_lshrrev_b32 v5, 1, v4
    v_lshlrev_b32 v5, 8, v5
    v_lshl_add_u32 v5, v8, 4, v5
    v_and_b32 v6, 1, v4
    v_lshl_add_u32 v5, v6, 3, v5
    s_waitcnt lgkmcnt(0)""")
    srd(8, "s4", "s5", WS_BYTES)
    if layer == 1: srd(12, "s6", "s7", XBYTES)
    else: xsrc_srd(1)
    RING = 6
    FR = lambda k, f: (k % RING) * 36 + 4*f
    def issue(k):
        for n in range(4):
            if k % 4 == 0 and k: a(f"s_add_u32 s{40+n}, s{40+n}, 4096")
            a(f"buffer_load_dwordx4 a[{FR(k,n)}:{FR(k,n)+3}], v3, s[8:11], s{40+n} offen offset:{1024*(k % 4)}")
        a(f"s_add_u32 s46, s44, {k*5120}\ns_add_u32 s47, s44, {k*5120 + 4096}")
        for m in range(5):
            a(f"buffer_load_dwordx4 a[{FR(k,4+m)}:{FR(k,4+m)+3}], v3, s[8:11], s{46 if m < 4 else 47} offen offset:{1024*(m % 4)}")
    for k in range(RING): issue(k)
    a("buffer_load_dwordx4 v[100:103], v3, s[8:11], s45 offen")
    a("buffer_load_dwordx4 v[104:107], v3, s[8:11], s45 offen offset:1024")
    a("buffer_load_dwordx2 v[108:109], v5, s[8:11], s45 offen offset:2048")
    ACC = lambda n, m: 16 + (n*5+m)*4
    seq = [("k", k) for k in range(RING)] + [("x", 0)]
    cnt = {"k": 9, "x": 3}
    for k in range(12):
        idx = seq.index(("k", k))
        after = sum(cnt[s[0]] for s in seq[idx+1:])
        a(f"s_waitcnt vmcnt({after})")
        for n in range(4):
            for m in range(5):
                c = f"v[{ACC(n,m)}:{ACC(n,m)+3}]"
                a(f"v_mfma_f32_16x16x32_bf16 {c}, a[{FR(k,4+m)}:{FR(k,4+m)+3}], a[{FR(k,n)}:{FR(k,n)+3}], {'0' if k == 0 else c}")
        if k + RING < 12:
            issue(k + RING); seq.append(("k", k + RING))
    for n in range(1, 4):
        a(f"""s_add_u32 s33, s32, {n}
        s_and_b32 s33, s33, 3
        s_lshl_b32 s33, s33, 2
        s_add_u32 s33, s33, s32
        s_mul_i32 s33, s33, 5120
        v_add_u32 v{9+n}, s33, v3""")
    for n in range(1, 4):
        for m in range(5):
            a(f"ds_write_b128 v{9+n}, v[{ACC(n,m)}:{ACC(n,m)+3}] offset:{m*1024}")
    for n in range(1, 4):
        a(f"""s_add_u32 s33, s32, {n}
        s_and_b32 s33, s33, 3
        s_lshl_b32 s34, s32, 2
        s_add_u32 s33, s33, s34
        s_mul_i32 s33, s33, 5120
        v_add_u32 v{12+n}, s33, v3""")
    a("""s_lshr_b32 s33, s32, 1
    s_lshl_b32 s33, s33, 5
    s_add_u32 s33, s33, s30
    s_and_b32 s34, s32, 1
    s_lshl_b32 s34, s34, 10
    s_add_u32 s33, s33, s34
    s_mul_i32 s33, s33, 1280
    s_mul_i32 s34, s31, 160
    s_add_u32 s48, s33, s34
    v_mul_u32_u24 v6, 81920, v8
    v_lshl_add_u32 v7, v4, 3, v6
    v_lshl_add_u32 v6, v4, 4, v6
    s_waitcnt lgkmcnt(0)
    s_barrier""")
    for n in range(1, 4):
        for m in range(5):
            a(f"ds_read_b128 v[{ACC(n,m)}:{ACC(n,m)+3}], v{12+n} offset:{m*1024}")
    for m in range(5):
        for d in range(2):
            src = 100 + (m >> 1)*4 + (m & 1)*2 + d if m < 4 else 108 + d
            a(f"v_lshlrev_b32 v110, 16, v{src}\nv_and_b32 v111, 0xffff0000, v{src}")
            a(f"v_add_f32 v{ACC(0,m)+2*d}, v{ACC(0,m)+2*d}, v110\nv_add_f32 v{ACC(0,m)+2*d+1}, v{ACC(0,m)+2*d+1}, v111")
    for n in range(1, 4):
        a(f"s_waitcnt lgkmcnt({5*(3-n)})")
        for m in range(5):
            for i in range(4):
                a(f"v_add_f32 v{ACC(0,m)+i}, v{ACC(0,m)+i}, v{ACC(n,m)+i}")
    for m in range(5):
        for d in range(2):
            dst = 100 + (m >> 1)*4 + (m & 1)*2 + d if m < 4 else 108 + d
            a(f"v_cvt_pk_bf16_f32 v{dst}, v{ACC(0,m)+2*d}, v{ACC(0,m)+2*d+1}")
    a("buffer_store_dwordx4 v[100:103], v6, s[12:15], s48 offen")
    a("buffer_store_dwordx4 v[104:107], v6, s[12:15], s48 offen offset:64")
    a("buffer_store_dwordx2 v[108:109], v7, s[12:15], s48 offen offset:128")
    end(name, 120, agpr=RING*36, vt=112)
    return name, LDS

k1a, l1a = gen_k1(0); k1b, l1b = gen_k1(1)
s2a, l2a, n2a = gen_s2(0); s2b, l2b, n2b = gen_s2(1)
g1, lg1 = gen_glu1()
g2a, lg2 = gen_glu2(0); g2b, _ = gen_glu2(1)
a.launch(k1a, 256, 256, l1a); a.launch(s2a, n2a, 256, l2a); a.launch(g1, 256, 256, lg1); a.launch(g2a, 256, 256, lg2)
a.launch(k1b, 256, 256, l1b); a.launch(s2b, n2b, 256, l2b); a.launch(g1, 256, 256, lg1); a.launch(g2b, 256, 256, lg2)
a.L, nadd = hazard.pad(a.L)
print("hazard pads inserted:", nadd, file=sys.stderr)
hdr = "".join(l for l in open("interleave_layers__spectral_fnet__glu_gated_glu__prompt.s.ref").readlines()[:13])
out = [x for x in sys.argv[1:] if not x.startswith("--")][0]
open(out, "w").write(a.text(hdr))
```

```python
class Asm:
    def __init__(self):
        self.L = []
        self.launches = []
        self.kds = []
        self._lab = 0
    def __call__(self, s):
        for ln in s.split("\n"):
            self.L.append("    " + ln.strip() if ln.strip() and not ln.strip().endswith(":") else ln.strip())
    def label(self, base="L"):
        self._lab += 1
        return f"{base}_{self._lab}"
    def kernel_begin(self, name):
        self.L.append(f".p2align 8\n.globl {name}\n.type {name},@function\n{name}:")
    def kernel_end(self, name, vgpr, sgpr=102, agpr=0, extra=""):
        self("s_endpgm")
        acc = (vgpr + 3) // 4 * 4
        nfv = acc + agpr if agpr else vgpr
        self.kds.append(f""".p2align 6
.amdhsa_kernel {name}
  .amdhsa_next_free_vgpr {nfv}
  .amdhsa_next_free_sgpr {sgpr}
  .amdhsa_accum_offset {acc}
  .amdhsa_group_segment_fixed_size 0
  .amdhsa_kernarg_size 96
  .amdhsa_user_sgpr_count 2
  .amdhsa_user_sgpr_kernarg_segment_ptr 1
  .amdhsa_system_sgpr_workgroup_id_x 1
{extra}.end_amdhsa_kernel""")
    def launch(self, name, grid, block, lds):
        self.launches.append(f"; @launch kernel={name} grid=({grid},1,1) block=({block},1,1) lds={lds}")
    def text(self, header=""):
        return (header + "\n".join(self.launches) + "\n.amdgcn_target \"amdgcn-amd-amdhsa--gfx950\"\n.text\n"
                + "\n".join(self.L) + "\n.section .rodata,\"a\"\n" + "\n".join(self.kds) + "\n")

STAMP_OFF = 200 << 20
NST = 15
def stamp(a, i):
    a(f"s_memrealtime s[{64+2*i}:{65+2*i}]")
def stamp_begin(a):
    for i in range(1, NST - 1): a(f"s_mov_b64 s[{64+2*i}:{65+2*i}], 0")
    stamp(a, 0)
    a("s_memtime s[94:95]")
def stamp_end(a, vt=0):
    a(f"""s_waitcnt vmcnt(0) lgkmcnt(0)
    s_memrealtime s[92:93]
    s_memtime s[96:97]
    s_load_dwordx4 s[60:63], s[0:1], 80
    v_lshrrev_b32 v{vt+4}, 6, v0
    v_lshlrev_b32 v{vt+4}, 6, v{vt+4}
    s_waitcnt lgkmcnt(0)
    s_lshr_b32 s60, s60, 9
    s_and_b32 s60, s60, 63
    s_lshl_b32 s60, s60, 17
    s_lshl_b32 s61, s2, 8
    s_add_u32 s60, s60, s61
    s_add_u32 s60, s60, {STAMP_OFF}
    s_sub_u32 s94, s96, s94
    v_add_u32 v{vt+4}, s60, v{vt+4}
    s_mov_b64 exec, 1""")
    for g in range(4):
        for j in range(4): a(f"v_mov_b32 v{vt+j}, s{64 + 2*(4*g+j)}")
        a(f"global_store_dwordx4 v{vt+4}, v[{vt}:{vt+3}], s[62:63] offset:{16*g}")
        a("s_nop 1")
```

```python
import sys, struct
from gen_common import *
import hazard

PROFILE = "--prof" in sys.argv
OPT = dict(x[2:].split("=") for x in sys.argv if x.startswith("--") and "=" in x)
def f32(x): return "0x%08x" % struct.unpack("<I", struct.pack("<f", x))[0]
SC = OPT.get("sc", "sc1").replace("+", " ")

MBY = 1 << 20
def Z_OFF(l):  return 1*MBY + l*3*MBY
def X1_OFF(l): return 7*MBY + l*3*MBY
def ST_OFF(l): return 13*MBY + l*(MBY//2)
def H_OFF(l):  return 14*MBY + l*6*MBY
X2_OFF  = 26*MBY
WP_OFF  = 29*MBY
WDP_OFF = 33*MBY
CS_OFF  = 35*MBY
FL_OFF  = 35*MBY + MBY//2
WS_BYTES = 0x1000_0000
XBYTES = 2048 * 640 * 2
WBYTES = 640 * 1536 * 2
KA = 24
def wp_pos(k, m): return 6*k + m if k < KA else 6*KA + (40-KA)*m + (k - KA)
SLOT = 24576; NS = 6
CSL = SLOT * NS
LDS_B = CSL + 3072

a = Asm()
issued = []
def vm(text, tag):
    a(text); issued.append(tag)
def wait_tags(tags):
    for t in tags: assert t in issued, t
    idx = max(j for j, t in enumerate(issued) if t in tags)
    n = len(issued) - 1 - idx
    a(f"s_waitcnt vmcnt({min(n, 63)})")
def st(i):
    if PROFILE: stamp(a, i)
def srd(n, lo, hi, size):
    a(f"s_mov_b32 s{n}, {lo}\ns_mov_b32 s{n+1}, {hi}\ns_mov_b32 s{n+2}, {size}\ns_mov_b32 s{n+3}, 0x20000")
def begin(name, nwg):
    issued.clear()
    a.kernel_begin(name)
    if PROFILE: stamp_begin(a)
    a(f"s_cmp_ge_u32 s2, {nwg}")
    a(f"s_cbranch_scc1 {name}_end")
def end(name, vgpr, agpr=0, vt=0):
    a(f"{name}_fin:")
    if PROFILE: stamp_end(a, vt)
    a(f"{name}_end:")
    a.kernel_end(name, vgpr, agpr=agpr)
def lane_ids():
    a("""v_lshrrev_b32 v1, 6, v0
    v_and_b32 v2, 63, v0
    v_readfirstlane_b32 s32, v1
    v_lshlrev_b32 v3, 4, v2
    v_lshrrev_b32 v4, 4, v2
    v_and_b32 v8, 15, v2""")
def bf16_round(dst, src):
    a(f"v_cvt_pk_bf16_f32 v{dst}, v{src}, v{src}")
    a(f"v_lshlrev_b32 v{dst}, 16, v{dst}")
def ln_scalars(regs):
    for S, Q in regs: a(f"v_mul_f32 v{S}, {f32(1.0/640)}, v{S}\nv_mul_f32 v{Q}, {f32(1.0/640)}, v{Q}")
    for S, Q in regs: a(f"v_fma_f32 v{Q}, -v{S}, v{S}, v{Q}")
    for S, Q in regs: a(f"v_max_f32 v{Q}, 0, v{Q}")
    for S, Q in regs: bf16_round(Q, Q)
    for S, Q in regs: a(f"v_add_f32 v{Q}, {f32(1e-5)}, v{Q}")
    for S, Q in regs: bf16_round(Q, Q)
    for S, Q in regs: a(f"v_sqrt_f32 v{Q}, v{Q}")
    for S, Q in regs: bf16_round(Q, Q)
def reduce_lanes(vs, t, steps=(16, 32)):
    for w in steps:
        for j, v in enumerate(vs): a(f"v_mov_b32 v{t+j}, v{v}")
        for j, v in enumerate(vs): a(f"v_permlane{w}_swap_b32 v{v}, v{t+j}")
        for j, v in enumerate(vs): a(f"v_add_f32 v{v}, v{v}, v{t+j}")
def capture(fn):
    g = globals(); old = g["a"]; sub = Asm(); g["a"] = sub
    fn(); g["a"] = old
    return [l.strip() for l in sub.L]
def decode_theta():
    a("""s_and_b32 s28, s2, 7
    s_lshr_b32 s24, s2, 3
    s_lshr_b32 s22, s24, 3
    s_lshl_b32 s22, s22, 3
    s_add_u32 s22, s22, s28
    s_and_b32 s24, s24, 7
    s_lshr_b32 s28, s22, 1
    s_sub_u32 s23, 32, s28
    s_cmp_eq_u32 s28, 0
    s_cselect_b32 s23, 16, s23
    s_bitcmp1_b32 s22, 0
    s_cselect_b32 s23, s23, s28""")
def decode_rb():
    a("""s_and_b32 s28, s2, 7
    s_lshr_b32 s29, s2, 3
    s_lshr_b32 s20, s28, 2
    s_lshl_b32 s20, s20, 3
    s_and_b32 s33, s29, 7
    s_add_u32 s20, s20, s33
    s_and_b32 s21, s28, 3
    s_lshl_b32 s21, s21, 2
    s_lshr_b32 s33, s29, 3
    s_add_u32 s21, s21, s33""")

def sync(sid, mine, group, gshift, between, flagv):
    lab = a.label("sync")
    a("s_barrier")
    a(mine); a(group)
    a(f"s_lshl_b32 s56, s56, 7\ns_add_u32 s56, s56, {FL_OFF + sid*32768}\ns_lshl_b32 s57, s57, 7\ns_add_u32 s57, s57, {FL_OFF + sid*32768}")
    a(f"v_mov_b32 v{flagv}, 1\nv_lshlrev_b32 v{flagv+1}, 7, v2")
    a(f"s_cmp_lg_u32 s32, 0\ns_cbranch_scc1 {lab}_a")
    a(f"s_mov_b64 exec, 1")
    a(f"buffer_store_dword v{flagv}, v{flagv+1}, s[8:11], s56 offen {SC}")
    a("s_mov_b64 exec, -1")
    a(f"{lab}_a:")
    between()
    a(f"s_cmp_lg_u32 s32, 0\ns_cbranch_scc1 {lab}_b")
    a(f"s_mov_b64 exec, {hex((1 << (1 << gshift)) - 1)}\ns_mov_b32 s58, 0x40000")
    a(f"{lab}_p:")
    a(f"buffer_load_dword v{flagv}, v{flagv+1}, s[8:11], s57 offen {SC}")
    a("s_sub_u32 s58, s58, 1\ns_waitcnt vmcnt(0)")
    a(f"v_cmp_ne_u32 vcc, 1, v{flagv}")
    a(f"s_cbranch_scc1 {lab}_x")
    a(f"s_cbranch_vccnz {lab}_p")
    a(f"{lab}_x:")
    a("s_mov_b64 exec, -1")
    a(f"{lab}_b:")
    a("s_barrier")

def k1_tables(MB, vmq):
    a("""v_lshrrev_b32 v23, 2, v8
    v_bfe_u32 v24, v8, 1, 1
    v_and_b32 v25, 1, v8""")
    a("s_mul_i32 s43, s24, 40\ns_add_u32 s43, s43, 1")
    a("v_lshlrev_b32 v26, 3, v23\nv_add3_u32 v26, v26, v24, s43")
    a("v_lshlrev_b32 v27, 1, v23\nv_add3_u32 v27, v27, v24, s43\nv_add_u32 v27, 32, v27")
    a("v_cvt_f32_u32 v26, v26\nv_cvt_f32_u32 v27, v27")
    for t in range(4):
        a(f"v_add_f32 v28, {f32(2.0*t)}, v26")
        a(f"v_mul_f32 v{12+t}, {f32(1.0/640)}, v28")
    a(f"v_mul_f32 v16, {f32(1.0/640)}, v27")
    a(f"v_cvt_f32_u32 v17, v25\nv_mul_f32 v17, {f32(0.25)}, v17")
    a("v_lshlrev_b32 v28, 3, v4\nv_lshl_add_u32 v28, v1, 1, v28\nv_cvt_f32_u32 v28, v28")
    for k in range(5): a(f"v_add_f32 v{18+k}, {f32(32.0*k)}, v28")
    a(f"""v_lshlrev_b32 v26, 31, v24
    v_xor_b32 v232, {f32(-1.0)}, v26
    v_or_b32 v26, v24, v25
    v_lshlrev_b32 v26, 31, v26
    v_xor_b32 v233, 1.0, v26
    v_xor_b32 v234, {f32(-1.0)}, v26
    v_lshlrev_b32 v26, 31, v23
    v_xor_b32 v235, v233, v26
    v_lshl_add_u32 v27, v1, 2, v3
    v_add_u32 v27, {MB}, v27""")
    for t in range(5):
        for k in range(5):
            r = 28 + ((t*5+k) % 4) * 3
            a(f"v_fma_f32 v{r}, v{12+t}, v{18+k}, v17")
            a(f"v_add_f32 v{r+1}, v{r}, v{12+t}")
            a(f"v_cos_f32 v{r}, v{r}")
            a(f"v_cos_f32 v{r+1}, v{r+1}")
            if vmq: vm(*vmq.pop(0))
            a(f"v_cvt_pk_bf16_f32 v{r+2}, v{r}, v{r+1}")
            a(f"ds_write_b32 v27, v{r+2} offset:{(t*5+k)*1024}")
    assert not vmq
def k1_f64():
    a(f"v_lshl_add_u32 v28, v1, 4, v8\nv_cvt_f32_u32 v28, v28\nv_mul_f32 v28, {f32(1.0/64)}, v28")
    a("v_lshlrev_b32 v29, 4, v4\nv_cvt_f32_u32 v29, v29\nv_mul_f32 v29, v29, v28\nv_add_f32 v36, v28, v28")
    for p in range(2):
        for jj in range(4):
            a(f"s_mov_b32 s44, {f32(float(p + 4*jj))}")
            a(f"v_fma_f32 v30, v28, s44, v29")
            a(f"v_add_f32 v31, v30, v36")
            a(f"v_cos_f32 v32, v30\nv_cos_f32 v33, v31\nv_sin_f32 v34, v30\nv_sin_f32 v35, v31")
            a(f"v_cvt_pk_bf16_f32 v{200+4*p+jj}, v32, v33")
            a(f"v_cvt_pk_bf16_f32 v{208+4*p+jj}, -v34, -v35")
    for j in range(4): a(f"v_mov_b32 v{108+j}, 0x3f803f80")
    a("v_mul_u32_u24 v10, 80, v4")
def k1_mbread(MB):
    a(f"v_add_u32 v27, {MB}, v3")
    for f in range(25): a(f"ds_read_b128 a[{4*f}:{4*f+3}], v27 offset:{f*1024}")
def k1_main(layer, GT, sb):
    XF = lambda k: 120 + 4*k if layer else 216 + (k % 4) * 4
    ACC = lambda q, t: 20 + (q*5+t)*4
    def xread(k):
        wait_tags({("x", k)})
        if layer == 0: a(f"ds_read_b128 v[{XF(k)}:{XF(k)+3}], v9 offset:{1024*k}")
    a("s_waitcnt lgkmcnt(0)")
    if layer == 0:
        xread(0); st(sb); xread(1)
    for k in range(20):
        q, kk = divmod(k, 5)
        if layer == 0:
            if k + 2 < 20: xread(k + 2); a("s_waitcnt lgkmcnt(2)")
            else: a(f"s_waitcnt lgkmcnt({19 - k})")
        else:
            xread(k)
            if k == 0: st(sb)
        x = f"v[{XF(k)}:{XF(k)+3}]"
        for t in range(5):
            c = f"v[{ACC(q,t)}:{ACC(q,t)+3}]"
            a(f"v_mfma_f32_16x16x32_bf16 {c}, {x}, a[{4*(t*5+kk)}:{4*(t*5+kk)+3}], {'0' if kk == 0 else c}")
        a(f"v_mfma_f32_16x16x32_bf16 v[100:103], {x}, v[108:111], {'0' if k == 0 else 'v[100:103]'}")
        a(f"v_mfma_f32_16x16x32_bf16 v[104:107], {x}, {x}, {'0' if k == 0 else 'v[104:107]'}")
    st(sb + 1)
    for t in range(5):
        for i in range(4):
            a(f"v_fmac_f32 v{ACC(0,t)+i}, v232, v{ACC(2,t)+i}")
            a(f"v_fmac_f32 v{ACC(1,t)+i}, v232, v{ACC(3,t)+i}")
        if t == 1:
            for i in range(4): a(f"ds_bpermute_b32 v{112+i}, v10, v{104+i} offset:{4*i}")
    a("s_waitcnt lgkmcnt(0)")
    ln_scalars([(100+i, 112+i) for i in range(4)])
    for i in range(4): a(f"v_rcp_f32 v{112+i}, v{112+i}")
    for t in range(5):
        sg = 235 if t == 4 else (233 if t % 2 == 0 else 234)
        for i in range(4):
            a(f"v_fmac_f32_dpp v{ACC(0,t)+i}, v{ACC(1,t)+i}, v{sg} quad_perm:[1,0,2,3] row_mask:0xf bank_mask:0xf")
    a(f"v_mul_u32_u24 v6, 144, v8\nv_lshlrev_b32 v7, 3, v4\nv_add3_u32 v6, v6, v7, {GT if GT <= 64 else 's45'}" if False else
      f"s_mov_b32 s45, {GT}\nv_mul_u32_u24 v6, 144, v8\nv_lshlrev_b32 v7, 3, v4\nv_add3_u32 v6, v6, v7, s45\ns_lshl_b32 s44, s32, 5\nv_add_u32 v9, s44, v6")
    for t in range(5):
        for i in range(4):
            a(f"v_mul_f32 v{ACC(0,t)+i}, v{ACC(0,t)+i}, v{112+i}")
        a(f"v_cvt_pk_bf16_f32 v{ACC(1,t)}, v{ACC(0,t)}, v{ACC(0,t)+1}")
        a(f"v_cvt_pk_bf16_f32 v{ACC(1,t)+1}, v{ACC(0,t)+2}, v{ACC(0,t)+3}")
        a(f"ds_write_b64 v9, v[{ACC(1,t)}:{ACC(1,t)+1}] offset:{t*16*144}")
    a(f"v_add_u32 v6, v6, v7")
    a("s_waitcnt lgkmcnt(0)\ns_barrier")
    st(sb + 2)
    for t in range(5):
        for p in range(2):
            r = 120 + (t*2+p)*4
            a(f"ds_read_b128 v[{r}:{r+3}], v6 offset:{t*16*144 + 64*p}")
    a(f"v_lshl_add_u32 v10, v1, 4, v8\nv_mul_u32_u24 v10, 40960, v10\nv_lshl_add_u32 v11, v4, 2, v10\nv_lshl_add_u32 v10, v4, 4, v10")
    a(f"s_mul_i32 s44, s23, 1280\ns_mul_i32 s45, s24, 80\ns_add_u32 s44, s44, s45\ns_add_u32 s44, s44, {Z_OFF(layer)}")
    T1 = lambda t: 20 + t*8
    T2 = lambda t: 24 + t*8
    for t in range(5):
        a(f"s_waitcnt lgkmcnt({8 - 2*t})")
        for p in range(2):
            r = 120 + (t*2+p)*4
            a(f"v_mfma_f32_16x16x32_bf16 v[{T1(t)}:{T1(t)+3}], v[{r}:{r+3}], v[{200+4*p}:{203+4*p}], {'0' if p == 0 else f'v[{T1(t)}:{T1(t)+3}]'}")
            a(f"v_mfma_f32_16x16x32_bf16 v[{T2(t)}:{T2(t)+3}], v[{r}:{r+3}], v[{208+4*p}:{211+4*p}], {'0' if p == 0 else f'v[{T2(t)}:{T2(t)+3}]'}")
    for t in range(5):
        b = 76 + 4*(t & 1)
        a(f"v_sub_f32 v{b}, v{T1(t)}, v{T2(t)+1}")
        a(f"v_sub_f32 v{b+1}, v{T1(t)+2}, v{T2(t)+3}")
        a(f"v_add_f32 v{b+2}, v{T2(t)}, v{T1(t)+1}")
        a(f"v_add_f32 v{b+3}, v{T2(t)+2}, v{T1(t)+3}")
        a(f"v_cvt_pk_bf16_f32 v{60+t}, v{b}, v{b+1}")
        a(f"v_cvt_pk_bf16_f32 v{68+t}, v{b+2}, v{b+3}")
    a("buffer_store_dwordx4 v[60:63], v10, s[8:11], s44 offen")
    a("buffer_store_dwordx4 v[68:71], v10, s[8:11], s44 offen offset:640")
    a("buffer_store_dword v64, v11, s[8:11], s44 offen offset:64")
    a("buffer_store_dword v72, v11, s[8:11], s44 offen offset:704")
    st(sb + 3)

def gen_A():
    name = "fa_kernel"
    GT, MB, PP, XS = 0, 11520, 37120, 67840
    LDS = XS + 81920
    begin(name, 256)
    a("s_load_dwordx2 s[4:5], s[0:1], 88")
    a("s_load_dwordx2 s[6:7], s[0:1], 0")
    a("s_load_dwordx4 s[16:19], s[0:1], 48")
    a("s_load_dwordx2 s[26:27], s[0:1], 64")
    decode_theta(); lane_ids()
    a(f"""v_sub_u32 v5, 0, v4
    v_xor_b32 v5, v5, v2
    v_and_b32 v5, 3, v5
    v_lshlrev_b32 v5, 4, v5
    v_lshrrev_b32 v6, 2, v2
    v_mul_u32_u24 v9, 81920, v6
    v_add_u32 v9, v9, v5
    s_lshr_b32 s33, s32, 1
    s_lshl_b32 s33, s33, 5
    s_add_u32 s33, s33, s23
    s_and_b32 s34, s32, 1
    s_lshl_b32 s34, s34, 10
    s_add_u32 s33, s33, s34
    s_mul_i32 s33, s33, 1280
    s_mul_i32 s35, s32, 20480
    s_add_u32 s35, s35, {XS}""")
    a(f"""s_and_b32 s38, s2, 7
    s_lshr_b32 s37, s2, 3
    v_lshrrev_b32 v10, 3, v2
    v_mul_u32_u24 v10, 3072, v10
    v_and_b32 v11, 7, v2
    v_lshl_add_u32 v10, v11, 4, v10
    s_mul_i32 s40, s38, {80*3072}
    s_and_b32 s41, s32, 1
    s_mul_i32 s41, s41, {40*3072}
    s_add_u32 s40, s40, s41
    s_lshl_b32 s41, s37, 7
    s_add_u32 s40, s40, s41
    s_mul_i32 s42, s32, 5120
    s_add_u32 s42, s42, {PP}
    s_waitcnt lgkmcnt(0)""")
    srd(8, "s4", "s5", WS_BYTES); srd(12, "s6", "s7", XBYTES)
    a("s_cmp_ge_u32 s2, 192")
    a(f"s_cbranch_scc1 {name}_wdld")
    a("s_cmp_lt_u32 s32, 2\ns_cselect_b32 s48, s16, s18\ns_cselect_b32 s49, s17, s19")
    a(f"s_mov_b32 s50, {WBYTES}\ns_mov_b32 s51, 0x20000")
    for i in range(5):
        a(f"s_add_u32 m0, s42, {1024*i}")
        a(f"buffer_load_dwordx4 v10, s[48:51], s40 offen lds")
        if i < 4: a(f"s_add_u32 s40, s40, {8*3072}")
    a(f"s_branch {name}_xld")
    a(f"{name}_wdld:")
    a(f"""s_sub_u32 s36, s2, 192
    s_mul_i32 s36, s36, 3
    s_add_u32 s36, s36, s32
    s_mul_i32 s40, s36, 10240
    s_mul_i32 s42, s32, 10240
    s_add_u32 s42, s42, {PP}""")
    srd(48, "s26", "s27", WBYTES)
    a("s_cmp_eq_u32 s32, 3")
    a(f"s_cbranch_scc1 {name}_xld")
    for i in range(10):
        if i in (4, 8): a("s_add_u32 s40, s40, 4096")
        if i % 4 == 0: a(f"s_add_u32 m0, s42, {(i // 4) * 4096}")
        a(f"buffer_load_dwordx4 v3, s[48:51], s40 offen offset:{1024*(i % 4)} lds")
    a(f"{name}_xld:")
    q = [(f"s_add_u32 m0, s35, {960*k}\nbuffer_load_dwordx4 v9, s[12:15], s33 offen offset:{64*k} lds", ("x", k)) for k in range(20)]
    for _ in range(4): vm(*q.pop(0))
    k1_tables(MB, q)
    st(1)
    a("s_waitcnt lgkmcnt(0)\ns_barrier")
    st(2)
    k1_mbread(MB); k1_f64()
    a("""v_sub_u32 v29, 0, v23
    v_xor_b32 v29, v29, v4
    v_and_b32 v29, 3, v29
    v_lshlrev_b32 v29, 4, v29
    v_lshl_add_u32 v9, v8, 6, v29
    v_add_u32 v9, s35, v9""")
    k1_main(0, GT, 3)
    a(f"""v_mov_b32 v12, 0
    v_lshlrev_b32 v13, 15, v0
    s_lshl_b32 s44, s2, 7
    s_add_u32 s44, s44, {FL_OFF}
    v_cmp_gt_u32 vcc, 6, v0
    s_and_saveexec_b64 s[46:47], vcc
    s_cbranch_execz {name}_nofl
    buffer_store_dword v12, v13, s[8:11], s44 offen
    {name}_nofl:
    s_mov_b64 exec, s[46:47]""")
    a("""v_bfe_u32 v13, v2, 2, 2          ; r
    v_and_b32 v14, 3, v2              ; c
    s_cmp_ge_u32 s2, 192""")
    a(f"s_cbranch_scc1 {name}_wdpp")
    a(f"""v_lshrrev_b32 v15, 1, v4
    v_lshl_add_u32 v12, v15, 3, v13
    v_lshlrev_b32 v12, 7, v12
    v_lshrrev_b32 v15, 1, v14
    v_mul_u32_u24 v15, 10240, v15
    v_add_u32 v12, v12, v15
    v_and_b32 v15, 1, v14
    v_lshl_add_u32 v12, v15, 4, v12
    v_and_b32 v15, 1, v4
    v_lshl_add_u32 v12, v15, 3, v12
    s_lshl_b32 s45, s32, 5
    v_add_u32 v12, s45, v12""")
    for kk in range(5):
        for s in range(2):
            a(f"ds_read_b64_tr_b16 v[{120+4*kk+2*s}:{121+4*kk+2*s}], v12 offset:{PP + (16*kk + 4*s)*128}")
    a(f"""s_lshl_b32 s45, s37, 2
    s_add_u32 s45, s45, s32
    s_mul_i32 s47, s45, 43
    s_lshr_b32 s47, s47, 8            ; cb
    s_mul_i32 s48, s47, 6
    s_sub_u32 s48, s45, s48           ; mu
    s_mul_i32 s49, s47, 245760
    s_add_u32 s49, s49, {WP_OFF}
    s_mul_i32 s50, s48, {40-KA}
    s_add_u32 s50, s50, {5*KA}
    s_mul_i32 s51, s38, 5
    s_waitcnt lgkmcnt(0)""")
    for kk in range(5):
        a(f"""s_add_u32 s52, s51, {kk}
        s_mul_i32 s53, s52, 6
        s_add_u32 s53, s53, s48
        s_add_u32 s54, s52, s50
        s_cmp_lt_u32 s52, {KA}
        s_cselect_b32 s53, s53, s54
        s_lshl_b32 s53, s53, 10
        s_add_u32 s53, s53, s49""")
        a(f"buffer_store_dwordx4 v[{120+4*kk}:{123+4*kk}], v3, s[8:11], s53 offen")
        a(f"v_mfma_f32_32x32x16_bf16 v[20:35], v[{120+4*kk}:{123+4*kk}], v[108:111], {'0' if kk == 0 else 'v[20:35]'}")
    a(f"""s_mul_i32 s52, s38, 96
    s_add_u32 s52, s52, s45
    s_lshl_b32 s52, s52, 7
    s_add_u32 s52, s52, {CS_OFF}
    v_lshrrev_b32 v12, 5, v2
    v_lshlrev_b32 v12, 4, v12
    s_mov_b32 s54, 1
    s_mov_b32 s55, 1
    s_mov_b64 exec, s[54:55]""")
    for j in range(4): a(f"buffer_store_dwordx4 v[{20+4*j}:{23+4*j}], v12, s[8:11], s52 offen offset:{32*j}")
    a("s_mov_b64 exec, -1")
    a(f"s_branch {name}_fin")
    a(f"{name}_wdpp:")
    a("s_cmp_eq_u32 s32, 3")
    a(f"s_cbranch_scc1 {name}_fin")
    a(f"""v_mul_u32_u24 v5, 1280, v13
    v_add_u32 v5, s42, v5
    s_lshr_b32 s44, s36, 2
    s_mul_i32 s44, s44, 5120
    s_and_b32 s45, s36, 3
    s_lshl_b32 s45, s45, 8
    s_add_u32 s44, s44, s45
    s_add_u32 s44, s44, {WDP_OFF}
    s_mov_b32 s45, {245760 - 5*1024}
    v_lshlrev_b32 v7, 4, v8""")
    for pi in range(10):
        a(f"""v_add_u32 v10, {4*pi}, v4
        v_mul_u32_u24 v11, 52, v10
        v_lshrrev_b32 v11, 8, v11
        v_mul_u32_u24 v12, 5, v11
        v_sub_u32 v12, v10, v12
        v_lshrrev_b32 v15, 1, v12
        v_lshlrev_b32 v15, 3, v15
        v_and_b32 v16, 1, v12
        v_add_u32 v15, v15, v16
        v_lshl_add_u32 v16, v14, 1, v15
        v_add_u32 v17, v14, v15
        v_cmp_gt_u32 vcc, 4, v12
        v_mul_u32_u24 v18, 20, v11
        v_mul_lo_u32 v11, v11, s45
        v_cndmask_b32 v16, v17, v16, vcc
        v_add_u32 v16, v16, v18
        v_lshl_add_u32 v16, v16, 3, v5
        v_lshl_add_u32 v11, v10, 10, v11
        v_add_u32 v{20+pi}, v11, v7""")
        for p in range(2):
            a(f"ds_read_b64_tr_b16 v[{120+pi*4+2*p}:{121+pi*4+2*p}], v16 offset:{p*5120}")
        if pi == 4: a("s_waitcnt lgkmcnt(0)")
    a("s_waitcnt lgkmcnt(0)")
    for pi in range(10):
        a(f"buffer_store_dwordx4 v[{120+pi*4}:{123+pi*4}], v{20+pi}, s[8:11], s44 offen")
    end(name, 240, agpr=100, vt=112)
    return name, LDS

def wops(c):
    out = []
    for i in range(6):
        t = ""
        if i == 0: t += f"s_add_u32 s27, s25, {c*SLOT}\ns_add_u32 m0, s26, {(c % NS)*SLOT}\n"
        if i == 4: t += f"s_add_u32 s27, s27, 4096\ns_add_u32 m0, s26, {(c % NS)*SLOT + 4096}\n"
        t += f"buffer_load_dwordx4 v3, s[8:11], s27 offen offset:{1024*(i % 4)} lds"
        out.append((t, ("W", c)))
    return out
def WDR(f):
    if f < 24: r = 160 + 4*f; return f"a[{r}:{r+3}]"
    if f < 48: r = 4*(f - 24); return f"a[{r}:{r+3}]"
    r = 192 + 4*(f - 48); return f"v[{r}:{r+3}]"
def wdops(f0, f1):
    out = []
    for f in range(f0, f1):
        t = f"s_add_u32 s30, s31, {f*1024}\n" if (f % 4 == 0 or f == f0) else ""
        if f % 4 and f == f0: t = f"s_add_u32 s30, s31, {(f // 4)*4096}\n"
        out.append((t + f"buffer_load_dwordx4 {WDR(f)}, v3, s[8:11], s30 offen offset:{1024*(f % 4)}", ("D", f)))
    return out

def s2_phase(name, layer):
    ZS = 5*SLOT
    a("""s_and_b32 s33, s21, 7
    s_lshr_b32 s34, s21, 3
    s_and_b32 s35, s32, 1
    s_xor_b32 s34, s34, s35
    s_sub_u32 s36, 32, s20
    s_cmp_eq_u32 s20, 0
    s_cselect_b32 s36, 16, s36
    s_cmp_eq_u32 s34, 0
    s_cselect_b32 s36, s20, s36
    s_lshl_b32 s37, s35, 5
    s_add_u32 s36, s36, s37           ; k
    s_sub_u32 s37, 64, s36
    s_and_b32 s37, s37, 63
    s_cmp_lt_u32 s32, 2
    s_cselect_b32 s37, s36, s37       ; ksrc
    s_cselect_b32 s39, -2, 0
    s_lshl_b32 s38, s20, 1
    s_add_u32 s38, s38, s34
    s_lshl_b32 s38, s38, 1
    s_add_u32 s38, s38, s35
    s_lshl_b32 s38, s38, 1""")
    for i in range(5):
        a(f"""v_add_u32 v20, {64*i}, v2
        v_mul_u32_u24 v21, 13108, v20
        v_lshrrev_b32 v21, 16, v21
        v_mul_u32_u24 v22, {640 - 80}, v21
        v_lshl_add_u32 v{10+i}, v20, 4, v22""")
    a(f"""s_mul_i32 s40, s37, 40960
    s_add_u32 s40, s40, s39
    s_mul_i32 s41, s33, 80
    s_add_u32 s40, s40, s41
    s_add_u32 s40, s40, {Z_OFF(layer)}
    s_mul_i32 s42, s32, 5120
    s_add_u32 s42, s42, {ZS}
    s_mul_i32 s43, s33, 5
    s_sub_u32 s44, 75, s43
    s_cmp_lt_u32 s32, 2
    s_cselect_b32 s43, s43, s44
    v_lshlrev_b32 v5, 4, v8
    v_lshl_add_u32 v5, v4, 3, v5
    s_mul_i32 s44, s38, 20480
    s_lshl_b32 s45, s43, 8
    s_add_u32 s44, s44, s45""")
    if layer == 0:
        a("""v_mul_u32_u24 v6, 81920, v8
        v_lshl_add_u32 v7, v4, 3, v6
        v_lshl_add_u32 v6, v4, 4, v6
        s_mul_i32 s46, s36, 1280
        s_lshl_b32 s45, s43, 4
        s_add_u32 s46, s46, s45
        s_add_u32 s47, s46, 1310720""")
    else:
        a(f"s_add_u32 s46, s44, {X2_OFF}\ns_add_u32 s47, s46, 20480")
    a(f"""s_mul_i32 s25, s21, 245760
    s_mul_i32 s26, s32, 6144
    s_add_u32 s25, s25, s26
    s_add_u32 s25, s25, {WP_OFF}
    s_mul_i32 s31, s24, 245760
    s_mul_i32 s30, s32, 61440
    s_add_u32 s31, s31, s30
    s_add_u32 s31, s31, {WDP_OFF}
    s_mul_i32 s29, s21, 768
    s_add_u32 s29, s29, {CS_OFF}
    v_lshlrev_b32 v47, 2, v0
    s_waitcnt lgkmcnt(0)""")
    srd(8, "s4", "s5", WS_BYTES)
    srd(12, "s6", "s7", XBYTES)
    for i in range(5):
        vm(f"s_add_u32 m0, s42, {i*1024}\nbuffer_load_dwordx4 v{10+i}, s[8:11], s40 offen lds", ("z", 0))
    XF = lambda nt: 100 + 6*nt
    for nt in range(2):
        if layer == 0:
            vm(f"buffer_load_dwordx4 v[{XF(nt)}:{XF(nt)+3}], v6, s[12:15], s{46+nt} offen", ("r", 0))
            vm(f"buffer_load_dwordx2 v[{XF(nt)+4}:{XF(nt)+5}], v7, s[12:15], s{46+nt} offen offset:64", ("r", 0))
        else:
            vm(f"buffer_load_dwordx4 v[{XF(nt)}:{XF(nt)+3}], v3, s[8:11], s{46+nt} offen", ("r", 0))
            vm(f"buffer_load_dwordx2 v[{XF(nt)+4}:{XF(nt)+5}], v5, s[8:11], s{46+nt} offen offset:1024", ("r", 0))
    q = [(f"buffer_load_dword v{112+p}, v47, s[8:11], s29 offen" + ("\ns_add_u32 s29, s29, 12288" if p < 7 else ""), ("c", 0)) for p in range(8)]
    NPRE = int(OPT.get("wpre", 8))
    w = [op for c in range(5) for op in wops(c)]
    q += w[:NPRE]; wrest = w[NPRE:]
    a(f"""v_lshlrev_b32 v36, 6, v8
    v_add_u32 v36, s36, v36
    v_cvt_f32_u32 v36, v36
    v_mul_f32 v36, {f32(1.0/2048)}, v36
    v_lshlrev_b32 v38, 2, v4
    v_cvt_f32_u32 v38, v38
    s_cmp_lt_u32 s32, 2
    s_cselect_b32 s48, 0, 0x80000000""")
    for nt in range(2):
        if nt: a("v_add_f32 v36, 0.5, v36")
        a("v_mul_f32 v37, v38, v36")
        for p in range(2):
            for jj in range(4):
                r = 40 + (jj & 1)*3
                a(f"s_mov_b32 s49, {f32(float(16*p + jj))}")
                a(f"v_fma_f32 v{r}, v36, s49, v37")
                a(f"v_cos_f32 v{r+1}, v{r}\nv_sin_f32 v{r+2}, v{r}")
                if q: vm(*q.pop(0))
                a(f"v_xor_b32 v{r+2}, s48, v{r+2}")
                a(f"v_cvt_pk_bf16_f32 v{20+8*nt+4*p+jj}, v{r+1}, v{r+2}")
    while q: vm(*q.pop(0))
    a("""v_bfe_u32 v15, v2, 2, 2
    v_and_b32 v16, 3, v2
    v_lshl_add_u32 v17, v4, 3, v15
    v_mul_u32_u24 v17, 80, v17
    v_add_u32 v17, s42, v17
    v_and_b32 v18, 1, v16""")
    a(f"""s_lshl_b32 s50, s38, 11
    s_lshl_b32 s51, s33, 4
    s_add_u32 s50, s50, s51
    s_lshr_b32 s51, s32, 1
    s_lshl_b32 s51, s51, 3
    s_add_u32 s50, s50, s51
    s_add_u32 s50, s50, {ST_OFF(layer)}
    s_add_u32 s44, s44, {X1_OFF(layer)}
    s_add_u32 s45, s44, 20480
    v_lshlrev_b32 v9, 7, v8
    v_mov_b32 v39, 0x3f803f80
    s_mov_b32 s52, -1
    s_mov_b32 s53, 0""")
    st(1)
    ACC = lambda nt, tl: 48 + (nt*3+tl)*4
    AF = lambda tl, p: 72 + (tl*2+p)*4
    a("s_cmp_ge_u32 s32, 2")
    a(f"s_cbranch_scc1 {name}_right")
    base = list(issued)
    for right in (0, 1):
        issued[:] = base
        if right:
            a(f"{name}_right:")
            a("v_lshlrev_b32 v16, 4, v16\nv_sub_u32 v19, v17, v16\nv_add_u32 v19, 64, v19\nv_lshlrev_b32 v18, 3, v18\nv_sub_u32 v46, v17, v18\nv_add_u32 v46, 8, v46")
        else:
            a("v_lshl_add_u32 v19, v16, 4, v17\nv_lshl_add_u32 v46, v18, 3, v17\nv_add_u32 v46, 64, v46")
        wait_tags({("z", 0)})
        for tl in range(3):
            for p in range(2):
                for s in range(2):
                    off = (32*p + 4*s)*80 + (0 if tl == 2 else ((8 - 8*tl) if right else 8*tl))
                    r = AF(tl, p) + 2*s
                    a(f"ds_read_b64_tr_b16 v[{r}:{r+1}], v{46 if tl == 2 else 19} offset:{off}")
        wait_tags({("r", 0)})
        for nt in range(2):
            for dw in range(6):
                tl, lo = dw >> 1, (dw & 1) * 2
                i0, i1 = (3 - lo, 2 - lo) if right else (lo, lo + 1)
                a(f"v_lshlrev_b32 v{ACC(nt,tl)+i0}, 16, v{XF(nt)+dw}")
                a(f"v_and_b32 v{ACC(nt,tl)+i1}, 0xffff0000, v{XF(nt)+dw}")
        if not right: a(f"v_mov_b32 v40, v{ACC(0,0)}\nv_mov_b32 v41, v{ACC(1,0)}")
        for tl in range(3):
            a(f"s_waitcnt lgkmcnt({8 - 4*tl})")
            for p in range(2):
                for nt in range(2):
                    c = f"v[{ACC(nt,tl)}:{ACC(nt,tl)+3}]"
                    a(f"v_mfma_f32_16x16x32_bf16 {c}, v[{AF(tl,p)}:{AF(tl,p)+3}], v[{20+8*nt+4*p}:{23+8*nt+4*p}], {c}")
        if not right:
            a("s_cmp_eq_u32 s33, 0\ns_cselect_b32 s54, 0xffff, 0\ns_mov_b32 s55, 0")
            a(f"v_cndmask_b32 v{ACC(0,0)}, v{ACC(0,0)}, v40, s[54:55]")
            a(f"v_cndmask_b32 v{ACC(1,0)}, v{ACC(1,0)}, v41, s[54:55]")
        for nt in range(2):
            for dw in range(6):
                tl, lo = dw >> 1, (dw & 1) * 2
                i0, i1 = (3 - lo, 2 - lo) if right else (lo, lo + 1)
                a(f"v_cvt_pk_bf16_f32 v{XF(nt)+dw}, v{ACC(nt,tl)+i0}, v{ACC(nt,tl)+i1}")
            vm(f"buffer_store_dwordx4 v[{XF(nt)}:{XF(nt)+3}], v3, s[8:11], s{44+nt} offen {SC}", ("s", 0))
        a("s_mov_b64 exec, s[52:53]")
        for nt in range(2):
            vm(f"buffer_store_dwordx2 v[{XF(nt)+4}:{XF(nt)+5}], v5, s[8:11], s{44+nt} offen offset:1024 {SC}", ("s", 0))
        a("s_mov_b64 exec, -1")
        for nt in range(2):
            for j in range(2):
                a(f"v_cndmask_b32 v{72+2*nt+j}, 0, v{XF(nt)+4+j}, s[52:53]")
        for nt in range(2):
            for dw in range(6):
                src = XF(nt)+dw if dw < 4 else 72+2*nt+dw-4
                c0 = "0" if dw == 0 else f"v{40+2*nt}"; c1 = "0" if dw == 0 else f"v{41+2*nt}"
                a(f"v_dot2_f32_bf16 v{40+2*nt}, v{src}, v39, {c0}")
                a(f"v_dot2_f32_bf16 v{41+2*nt}, v{src}, v{src}, {c1}")
        reduce_lanes([40, 41, 42, 43], 76)
        a("s_mov_b64 exec, 0xffff")
        vm(f"buffer_store_dwordx2 v[40:41], v9, s[8:11], s50 offen {SC}", ("s", 0))
        vm(f"buffer_store_dwordx2 v[42:43], v9, s[8:11], s50 offen offset:2048 {SC}", ("s", 0))
        a("s_mov_b64 exec, -1")
        if not right: a(f"s_branch {name}_s2done")
    a(f"{name}_s2done:")
    st(2)
    ND = int(OPT.get("wdrain", 6))
    for op in wrest[:ND]: vm(*op)
    wrest = wrest[ND:]
    wait_tags({("c", 0)})
    a(f"""v_add_f32 v112, v112, v113
    v_add_f32 v114, v114, v115
    v_add_f32 v116, v116, v117
    v_add_f32 v118, v118, v119
    v_add_f32 v112, v112, v114
    v_add_f32 v116, v116, v118
    v_add_f32 v112, v112, v116
    v_cvt_pk_bf16_f32 v113, v112, v112
    v_lshlrev_b32 v113, 16, v113
    v_sub_f32 v113, v112, v113
    v_cvt_pk_bf16_f32 v112, v112, v113
    v_mov_b32 v113, 0
    v_mov_b32 v114, 0
    v_mov_b32 v115, 0
    v_lshlrev_b32 v47, 2, v47
    v_add_u32 v47, {CSL}, v47
    s_cmp_eq_u32 s32, 3
    s_cbranch_scc1 {name}_nocs
    ds_write_b128 v47, v[112:115]
    {name}_nocs:
    s_waitcnt lgkmcnt(0)""")
    wait_tags({("s", 0)})
    st(3)
    return wrest

def glu1_phase(layer):
    D = int(OPT.get("g1d", 8)); R = D + 2
    AFB = 112; OUT = AFB + 4*R; SV = OUT + 8
    assert SV + 16 <= 192
    a(f"""s_lshl_b32 s33, s20, 2
    s_add_u32 s33, s33, s32           ; T
    s_mul_i32 s34, s33, 40960
    s_add_u32 s34, s34, {X1_OFF(layer)}
    s_mul_i32 s40, s33, 98304
    s_mul_i32 s41, s21, 3072
    s_add_u32 s40, s40, s41
    s_add_u32 s40, s40, {H_OFF(layer)}
    s_lshl_b32 s43, s33, 12
    s_add_u32 s43, s43, {ST_OFF(layer)}
    v_and_b32 v9, 1, v4
    v_lshrrev_b32 v10, 1, v4
    v_lshlrev_b32 v11, 4, v8
    v_lshl_add_u32 v11, v10, 8, v11
    v_mul_u32_u24 v12, 20480, v9
    v_add_u32 v12, v12, v11           ; x voffset
    v_mul_u32_u24 v13, 49152, v9
    v_add_u32 v13, v13, v11           ; h voffset
    v_and_b32 v14, 31, v2
    v_lshlrev_b32 v15, 7, v14
    v_lshl_add_u32 v15, v10, 6, v15
    v_lshlrev_b32 v14, 4, v14
    v_add_u32 v14, {CSL}, v14
    v_add_u32 v5, {2*SLOT}, v3
    v_add_u32 v6, {4*SLOT}, v3
    s_mov_b32 s46, -1
    s_mov_b32 s47, 0""")
    return D, R, AFB, OUT, SV

def glu1_main(layer, P):
    D, R, AFB, OUT, SV = P
    order = sorted([(wp_pos(k, m), k, m) for k in range(40) for m in range(6)])
    def xop(k):
        t = f"s_add_u32 s39, s34, {k*512}\n" if k % 8 == 0 else ""
        return (t + f"buffer_load_dwordx4 a[{4*k}:{4*k+3}], v12, s[8:11], s39 offen offset:{512*(k % 8)} {SC}", ("X", k))
    for k in range(4): vm(*xop(k))
    slots = {}
    def put(i, op): slots.setdefault(i, []).append(op)
    early = [xop(k) for k in range(4, 8)] + [(f"buffer_load_dwordx4 v[{SV+4*j}:{SV+4*j+3}], v15, s[8:11], s43 offen offset:{16*j} {SC}", ("T", 0)) for j in range(4)] + [xop(k) for k in range(8, 40)]
    for j, op in enumerate(early): put(2*j - (j > 8)*0, op)
    mid = wops(5) + wops(6) + wdops(48, 54) + wops(7) + wdops(54, 60) + wops(8)
    for j, op in enumerate(mid): put(81 + int(j * 62 / len(mid)), op)
    late = wdops(24, 30) + wops(9) + wdops(30, 48)
    for j, op in enumerate(late): put(146 + 3*j, op)
    ACC = lambda m: 16 + 16*m
    seq = []
    for i, (p, k, m) in enumerate(order):
        seq.append(("f", i, k, m))
        if k == 39: seq.append(("e", i, 40, m))
    N = len(seq)
    AF = lambda j: AFB + (j % R)*4
    LB = {0: 3, 1: 5, 2: 6}
    def aread(j):
        kind, i, k, m = seq[j]
        if kind == "f":
            c, o = divmod(i, 24); slot = c % NS
            a(f"ds_read_b128 v[{AF(j)}:{AF(j)+3}], v{LB[slot // 2]} offset:{(slot & 1)*SLOT + o*1024}")
        else:
            a(f"ds_read_b128 v[{AF(j)}:{AF(j)+3}], v14 offset:{m*512}")
    CT, SD, XB = SV, SV + 1, SV + 4
    def stats():
        for j in (0, 4, 8, 12): a(f"v_add_f32 v{SV+j}, v{SV+j}, v{SV+j+2}\nv_add_f32 v{SV+j+1}, v{SV+j+1}, v{SV+j+3}")
        for j in (0, 8): a(f"v_add_f32 v{SV+j}, v{SV+j}, v{SV+j+4}\nv_add_f32 v{SV+j+1}, v{SV+j+1}, v{SV+j+5}")
        a(f"v_add_f32 v{SV}, v{SV}, v{SV+8}\nv_add_f32 v{SV+1}, v{SV+1}, v{SV+9}")
        reduce_lanes([SV, SV+1], SV+2, steps=(32,))
        ln_scalars([(SV, SV+1)])
        a(f"v_cvt_pk_bf16_f32 v{SV+2}, -v{SV}, -v{SV}")
        a(f"v_rcp_f32 v{SV}, v{SV+1}")
        a(f"v_cndmask_b32 v{XB}, 0, v{SV+2}, s[46:47]\nv_mov_b32 v{XB+1}, 0\nv_mov_b32 v{XB+2}, 0\nv_mov_b32 v{XB+3}, 0")
        a(f"v_mul_f32 v{SV}, {f32(-1.4426950408889634)}, v{SV}")
    def epi(m):
        A = ACC(m); gi = [0,1,2,3,8,9,10,11]; ui = [4,5,6,7,12,13,14,15]; o = OUT + 4*(m & 1)
        ops = []
        for h in range(2):
            js = range(4*h, 4*h+4)
            for j in js: ops.append(f"v_mul_f32 v{A+gi[j]}, v{CT}, v{A+gi[j]}")
            for j in js: ops.append(f"v_exp_f32 v{A+gi[j]}, v{A+gi[j]}")
            for j in js: ops.append(f"v_fma_f32 v{A+gi[j]}, v{A+gi[j]}, v{SD}, v{SD}")
            for j in js: ops.append(f"v_rcp_f32 v{A+gi[j]}, v{A+gi[j]}")
            for j in js: ops.append(f"v_mul_f32 v{A+gi[j]}, v{A+gi[j]}, v{A+ui[j]}")
            for j in (2*h, 2*h+1): ops.append(f"v_cvt_pk_bf16_f32 v{o+j}, v{A+gi[2*j]}, v{A+gi[2*j+1]}")
        ops.append(f"buffer_store_dwordx4 v[{o}:{o+3}], v13, s[8:11], s40 offen offset:{m*512} {SC}")
        return ops
    for j in range(D): aread(j)
    pend = []; donex = set()
    for j, (kind, i, k, m) in enumerate(seq):
        if kind == "f" and i == 1: st(5)
        if kind == "f" and i == 72: st(6)
        if kind == "f" and i == 144: st(7)
        nxt = j + D
        if nxt < N and seq[nxt][0] == "f" and seq[nxt][1] % 24 == 0:
            wait_tags({("W", seq[nxt][1] // 24)}); a("s_barrier")
        if kind == "f" and k not in donex:
            wait_tags({("X", k)}); donex.add(k)
        if kind == "f" and i == 90:
            wait_tags({("T", 0)}); pend = capture(stats)
        a(f"s_waitcnt lgkmcnt({min(D - 1, N - 1 - j)})")
        cc = f"v[{ACC(m)}:{ACC(m)+15}]"
        b = f"a[{4*k}:{4*k+3}]" if kind == "f" else f"v[{XB}:{XB+3}]"
        a(f"v_mfma_f32_32x32x16_bf16 {cc}, v[{AF(j)}:{AF(j)+3}], {b}, {'0' if k == 0 else cc}")
        if nxt < N: aread(nxt)
        if kind == "f":
            for op in slots.pop(i, []): vm(*op)
            if k == KA + 1 and m > 0:
                assert not pend
                pend = epi(m - 1)
        for _ in range(3):
            if pend:
                op = pend.pop(0)
                if op.startswith("buffer"): vm(op, ("s", 1))
                else: a(op)
    assert not pend and not slots, (pend, slots)
    st(8)
    for op in epi(5):
        if op.startswith("buffer"): vm(op, ("s", 1))
        else: a(op)

def glu2_setup(layer):
    for n in range(4):
        a(f"""s_add_u32 s33, s32, {n}
        s_and_b32 s33, s33, 3
        s_lshl_b32 s34, s22, 2
        s_add_u32 s34, s34, s33
        s_mul_i32 s34, s34, 49152
        s_mul_i32 s35, s32, 12288
        s_add_u32 s34, s34, s35
        s_add_u32 s{40+n}, s34, {H_OFF(layer)}""")
    a(f"""s_lshl_b32 s34, s22, 2
    s_add_u32 s34, s34, s32
    s_mul_i32 s34, s34, 20480
    s_mul_i32 s35, s24, 2560
    s_add_u32 s49, s34, s35
    s_add_u32 s45, s49, {X1_OFF(layer)}
    v_lshrrev_b32 v5, 1, v4
    v_lshlrev_b32 v5, 8, v5
    v_lshl_add_u32 v5, v8, 4, v5
    v_and_b32 v6, 1, v4
    v_lshl_add_u32 v5, v6, 3, v5""")
    for n in range(1, 4):
        a(f"""s_add_u32 s33, s32, {n}
        s_and_b32 s33, s33, 3
        s_lshl_b32 s34, s33, 2
        s_add_u32 s34, s34, s32
        s_mul_i32 s34, s34, 5120
        v_add_u32 v{9+n}, s34, v3
        s_lshl_b32 s34, s32, 2
        s_add_u32 s33, s33, s34
        s_mul_i32 s33, s33, 5120
        v_add_u32 v{12+n}, s33, v3""")
    if layer == 1:
        a("""s_lshr_b32 s33, s32, 1
        s_lshl_b32 s33, s33, 5
        s_add_u32 s33, s33, s23
        s_and_b32 s34, s32, 1
        s_lshl_b32 s34, s34, 10
        s_add_u32 s33, s33, s34
        s_mul_i32 s33, s33, 1280
        s_mul_i32 s34, s24, 160
        s_add_u32 s48, s33, s34
        v_mul_u32_u24 v6, 81920, v8
        v_lshl_add_u32 v7, v4, 3, v6
        v_lshl_add_u32 v6, v4, 4, v6""")
    else:
        a(f"s_add_u32 s48, s49, {X2_OFF}")

def glu2_main(layer):
    RING = 6
    HR = lambda k, n: 96 + (k % RING)*16 + 4*n
    X = 240
    def ops(k):
        out = []
        for n in range(4):
            t = f"s_add_u32 s{40+n}, s{40+n}, 4096\n" if (k % 4 == 0 and k) else ""
            out.append((t + f"buffer_load_dwordx4 v[{HR(k,n)}:{HR(k,n)+3}], v3, s[8:11], s{40+n} offen offset:{1024*(k % 4)} {SC}", ("h", k)))
        return out
    xops = [(f"buffer_load_dwordx4 v[{X}:{X+3}], v3, s[8:11], s45 offen {SC}", ("x1", 0)), (f"buffer_load_dwordx4 v[{X+4}:{X+7}], v3, s[8:11], s45 offen offset:1024 {SC}", ("x1", 0)),
            (f"buffer_load_dwordx2 v[{X+8}:{X+9}], v5, s[8:11], s45 offen offset:2048 {SC}", ("x1", 0))]
    for k in range(2):
        for o in ops(k): vm(*o)
    plan = {0: ops(2) + ops(3), 1: ops(4) + ops(5), 8: xops}
    for k in range(2, 8): plan[k] = ops(k + 4)
    ACC = lambda n, m: 16 + (n*5+m)*4
    for k in range(12):
        wait_tags({("h", k)} | {("D", 5*k + m) for m in range(5)})
        if k == 0: st(10)
        pend = list(plan.get(k, []))
        j = 0; wr = []
        for n in (1, 2, 3, 0):
            for m in range(5):
                c = f"v[{ACC(n,m)}:{ACC(n,m)+3}]"
                a(f"v_mfma_f32_16x16x32_bf16 {c}, {WDR(5*k+m)}, v[{HR(k,n)}:{HR(k,n)+3}], {'0' if k == 0 else c}")
                j += 1
                if j % 2 == 1 and pend: vm(*pend.pop(0))
                if k == 11:
                    if n: wr.append(f"ds_write_b128 v{9+n}, {c} offset:{m*1024}")
                    if j >= 9 and wr: a(wr.pop(0))
        assert not pend
        for w_ in wr: a(w_)
    st(11)
    wait_tags({("x1", 0)})
    XR = lambda m, d: X + (m >> 1)*4 + (m & 1)*2 + d if m < 4 else X + 8 + d
    for m in range(5):
        for d in range(2):
            a(f"v_lshlrev_b32 v250, 16, v{XR(m,d)}\nv_and_b32 v251, 0xffff0000, v{XR(m,d)}")
            a(f"v_add_f32 v{ACC(0,m)+2*d}, v{ACC(0,m)+2*d}, v250\nv_add_f32 v{ACC(0,m)+2*d+1}, v{ACC(0,m)+2*d+1}, v251")
    a("s_waitcnt lgkmcnt(0)\ns_barrier")
    for n in range(1, 4):
        for m in range(5):
            a(f"ds_read_b128 v[{ACC(n,m)}:{ACC(n,m)+3}], v{12+n} offset:{m*1024}")
    for n in range(1, 4):
        a(f"s_waitcnt lgkmcnt({5*(3-n)})")
        for m in range(5):
            for i in range(4):
                a(f"v_add_f32 v{ACC(0,m)+i}, v{ACC(0,m)+i}, v{ACC(n,m)+i}")
    for m in range(5):
        for d in range(2):
            a(f"v_cvt_pk_bf16_f32 v{XR(m,d)}, v{ACC(0,m)+2*d}, v{ACC(0,m)+2*d+1}")
    if layer == 1:
        a(f"buffer_store_dwordx4 v[{X}:{X+3}], v6, s[12:15], s48 offen")
        a(f"buffer_store_dwordx4 v[{X+4}:{X+7}], v6, s[12:15], s48 offen offset:64")
        a(f"buffer_store_dwordx2 v[{X+8}:{X+9}], v7, s[12:15], s48 offen offset:128")
    else:
        vm(f"buffer_store_dwordx4 v[{X}:{X+3}], v3, s[8:11], s48 offen {SC}", ("s", 2))
        vm(f"buffer_store_dwordx4 v[{X+4}:{X+7}], v3, s[8:11], s48 offen offset:1024 {SC}", ("s", 2))
        vm(f"buffer_store_dwordx2 v[{X+8}:{X+9}], v5, s[8:11], s48 offen offset:2048 {SC}", ("s", 2))

def gen_B(layer):
    name = f"fb{layer}_kernel"
    begin(name, 256)
    a("s_load_dwordx2 s[4:5], s[0:1], 88")
    a(f"s_load_dwordx2 s[6:7], s[0:1], {0 if layer == 0 else 72}")
    decode_rb(); decode_theta(); lane_ids()
    wrest = s2_phase(name, layer)
    P = [None]
    def between1():
        for op in wrest + wdops(0, 24): vm(*op)
        P[0] = glu1_phase(layer)
        wait_tags({("W", 0)})
    sync(3*layer, "s_lshl_b32 s56, s20, 4\ns_add_u32 s56, s56, s21", "s_lshl_b32 s57, s20, 4", 4, between1, 252)
    st(4)
    glu1_main(layer, P[0])
    wait_tags({("s", 1)})
    st(9)
    sync(3*layer + 1, "s_lshl_b32 s56, s20, 4\ns_add_u32 s56, s56, s21", "s_lshr_b32 s57, s22, 1\ns_lshl_b32 s57, s57, 4", 4, lambda: glu2_setup(layer), 252)
    glu2_main(layer)
    if layer == 0:
        MB, GT = 81920, 107520
        st(12)
        k1_tables(MB, [])
        a("s_waitcnt lgkmcnt(0)")
        wait_tags({("s", 2)})
        def between3():
            k1_mbread(MB); k1_f64()
            a(f"s_lshl_b32 s33, s22, 2\ns_add_u32 s33, s33, s32\ns_mul_i32 s33, s33, 20480\ns_add_u32 s33, s33, {X2_OFF}")
        sync(2, "s_lshl_b32 s56, s22, 3\ns_add_u32 s56, s56, s24", "s_lshl_b32 s57, s22, 3", 3, between3, 252)
        st(13)
        for k in range(20):
            t = "s_add_u32 s33, s33, 4096\n" if (k % 4 == 0 and k) else ""
            vm(t + f"buffer_load_dwordx4 v[{120+4*k}:{123+4*k}], v3, s[8:11], s33 offen offset:{1024*(k % 4)} {SC}", ("x", k))
        global PROFILE
        sp = PROFILE; PROFILE = False
        k1_main(1, GT, 0)
        PROFILE = sp
    end(name, 256, agpr=256, vt=112)
    return name, LDS_B

n, l = gen_A(); a.launch(n, 256, 256, l)
for layer in range(2):
    n, l = gen_B(layer); a.launch(n, 256, 256, l)
a.L, nadd = hazard.pad(a.L)
print("hazard pads inserted:", nadd, file=sys.stderr)
hdr = "".join(l for l in open("interleave_layers__spectral_fnet__glu_gated_glu__prompt.s.ref").readlines()[:13])
out = [x for x in sys.argv[1:] if not x.startswith("--")][0]
open(out, "w").write(a.text(hdr))
```

```python
import sys, struct
from gen_common import *
import hazard

PROFILE = "--prof" in sys.argv
OPT = dict(x[2:].split("=") for x in sys.argv if x.startswith("--") and "=" in x)
def f32(x): return "0x%08x" % struct.unpack("<I", struct.pack("<f", x))[0]
SC = OPT.get("sc", "sc1").replace("+", " ")

MBY = 1 << 20
ASC = OPT.get("asc", "").replace("+", " ")
def Z_OFF(l):  return 1*MBY + l*3*MBY
def X1_OFF(l): return 7*MBY + l*3*MBY
def ST_OFF(l): return 13*MBY + l*(MBY//2)
def H_OFF(l):  return 14*MBY + l*6*MBY
X2_OFF  = 26*MBY
WP_OFF  = 29*MBY
WDP_OFF = 33*MBY
CS_OFF  = 35*MBY
FL_OFF  = 35*MBY + MBY//2
WS_BYTES = 0x1000_0000
XBYTES = 2048 * 640 * 2
WBYTES = 640 * 1536 * 2
KA = 24
def wp_pos(k, m): return 6*k + m if k < KA else 6*KA + (40-KA)*m + (k - KA)
SLOT = 24576; NS = 6
CSL = SLOT * NS
LDS_B = CSL + 3072

a = Asm()
issued = []
def vm(text, tag):
    a(text); issued.append(tag)
def wait_tags(tags):
    for t in tags: assert t in issued, t
    idx = max(j for j, t in enumerate(issued) if t in tags)
    n = len(issued) - 1 - idx
    a(f"s_waitcnt vmcnt({min(n, 63)})")
def st(i, mode=""):
    if OPT.get("pmode", "") and i < 8 and mode != OPT["pmode"]: return
    if mode and mode != OPT.get("pmode", ""): return
    if PROFILE:
        if "cyc" in OPT: a(f"s_memtime s[{64+2*i}:{65+2*i}]")
        else: stamp(a, i)
def srd(n, lo, hi, size):
    a(f"s_mov_b32 s{n}, {lo}\ns_mov_b32 s{n+1}, {hi}\ns_mov_b32 s{n+2}, {size}\ns_mov_b32 s{n+3}, 0x20000")
def begin(name, nwg):
    issued.clear()
    a.kernel_begin(name)
    if PROFILE: stamp_begin(a)
    a(f"s_cmp_ge_u32 s2, {nwg}")
    a(f"s_cbranch_scc1 {name}_end")
def end(name, vgpr, agpr=0, vt=0):
    a(f"{name}_fin:")
    if PROFILE: stamp_end(a, vt)
    a(f"{name}_end:")
    a.kernel_end(name, vgpr, agpr=agpr)
def lane_ids():
    a("""v_lshrrev_b32 v1, 6, v0
    v_and_b32 v2, 63, v0
    v_readfirstlane_b32 s32, v1
    v_lshlrev_b32 v3, 4, v2
    v_lshrrev_b32 v4, 4, v2
    v_and_b32 v8, 15, v2""")
def bf16_round(dst, src):
    a(f"v_cvt_pk_bf16_f32 v{dst}, v{src}, v{src}")
    a(f"v_lshlrev_b32 v{dst}, 16, v{dst}")
def ln_scalars(regs):
    for S, Q in regs: a(f"v_mul_f32 v{S}, {f32(1.0/640)}, v{S}\nv_mul_f32 v{Q}, {f32(1.0/640)}, v{Q}")
    for S, Q in regs: a(f"v_fma_f32 v{Q}, -v{S}, v{S}, v{Q}")
    for S, Q in regs: a(f"v_max_f32 v{Q}, 0, v{Q}")
    for S, Q in regs: bf16_round(Q, Q)
    for S, Q in regs: a(f"v_add_f32 v{Q}, {f32(1e-5)}, v{Q}")
    for S, Q in regs: bf16_round(Q, Q)
    for S, Q in regs: a(f"v_sqrt_f32 v{Q}, v{Q}")
    for S, Q in regs: bf16_round(Q, Q)
def reduce_lanes(vs, t, steps=(16, 32)):
    for w in steps:
        for j, v in enumerate(vs): a(f"v_mov_b32 v{t+j}, v{v}")
        for j, v in enumerate(vs): a(f"v_permlane{w}_swap_b32 v{v}, v{t+j}")
        for j, v in enumerate(vs): a(f"v_add_f32 v{v}, v{v}, v{t+j}")
def capture(fn):
    g = globals(); old = g["a"]; sub = Asm(); g["a"] = sub
    fn(); g["a"] = old
    return [l.strip() for l in sub.L]
def decode_theta():
    a("""s_and_b32 s28, s2, 7
    s_lshr_b32 s24, s2, 3
    s_lshr_b32 s22, s24, 3
    s_lshl_b32 s22, s22, 3
    s_add_u32 s22, s22, s28
    s_and_b32 s24, s24, 7
    s_lshr_b32 s28, s22, 1
    s_sub_u32 s23, 32, s28
    s_cmp_eq_u32 s28, 0
    s_cselect_b32 s23, 16, s23
    s_bitcmp1_b32 s22, 0
    s_cselect_b32 s23, s23, s28""")
def decode_rb():
    a("""s_and_b32 s28, s2, 7
    s_lshr_b32 s29, s2, 3
    s_lshr_b32 s20, s28, 2
    s_lshl_b32 s20, s20, 3
    s_and_b32 s33, s29, 7
    s_add_u32 s20, s20, s33
    s_and_b32 s21, s28, 3
    s_lshl_b32 s21, s21, 2
    s_lshr_b32 s33, s29, 3
    s_add_u32 s21, s21, s33""")

def signal(sid, mine, flagv):
    a(mine)
    a(f"s_lshl_b32 s56, s56, 7\ns_lshl_b32 s57, s57, 2\ns_add_u32 s56, s56, s57\ns_add_u32 s56, s56, {FL_OFF + sid*32768}")
    a(f"v_mov_b32 v{flagv}, 1\nv_mov_b32 v{flagv+1}, 0\ns_mov_b64 exec, 1")
    vm(f"buffer_store_dword v{flagv}, v{flagv+1}, s[8:11], s56 offen {SC}", ("f", sid))
    a("s_mov_b64 exec, -1")
def await_prep(sid, where, flagv):
    a(where)
    a(f"s_lshl_b32 s57, s57, 7\ns_lshl_b32 s58, s58, 2\ns_add_u32 s57, s57, s58\ns_add_u32 s59, s57, {FL_OFF + sid*32768}")
    a(f"v_lshlrev_b32 v{flagv+1}, 2, v2")
def await_(nfl, flagv):
    lab = a.label("sync")
    if nfl < 64: a(f"s_mov_b64 exec, {hex((1 << nfl) - 1)}")
    a("s_mov_b32 s58, 0x40000")
    a(f"{lab}_p:")
    a(f"buffer_load_dword v{flagv}, v{flagv+1}, s[8:11], s59 offen {SC}")
    a("s_sub_u32 s58, s58, 1\ns_waitcnt vmcnt(0)")
    a(f"v_cmp_ne_u32 vcc, 1, v{flagv}")
    a(f"s_cbranch_scc1 {lab}_x")
    a(f"s_cbranch_vccnz {lab}_p")
    a(f"{lab}_x:")
    a("s_mov_b64 exec, -1")

def k1_tables(MB, vmq, split=None):
    a("""v_lshrrev_b32 v23, 2, v8
    v_bfe_u32 v24, v8, 1, 1
    v_and_b32 v25, 1, v8""")
    a("s_mul_i32 s43, s24, 40\ns_add_u32 s43, s43, 1")
    a("v_lshlrev_b32 v26, 3, v23\nv_add3_u32 v26, v26, v24, s43")
    a("v_lshlrev_b32 v27, 1, v23\nv_add3_u32 v27, v27, v24, s43\nv_add_u32 v27, 32, v27")
    a("v_cvt_f32_u32 v26, v26\nv_cvt_f32_u32 v27, v27")
    for t in range(4):
        a(f"v_add_f32 v28, {f32(2.0*t)}, v26")
        a(f"v_mul_f32 v{12+t}, {f32(1.0/640)}, v28")
    a(f"v_mul_f32 v16, {f32(1.0/640)}, v27")
    a(f"v_cvt_f32_u32 v17, v25\nv_mul_f32 v17, {f32(0.25)}, v17")
    a("v_lshlrev_b32 v28, 3, v4\nv_lshl_add_u32 v28, v1, 1, v28\nv_cvt_f32_u32 v28, v28")
    for k in range(5): a(f"v_add_f32 v{18+k}, {f32(32.0*k)}, v28")
    a(f"""v_lshlrev_b32 v26, 31, v24
    v_xor_b32 v232, {f32(-1.0)}, v26
    v_or_b32 v26, v24, v25
    v_lshlrev_b32 v26, 31, v26
    v_xor_b32 v233, 1.0, v26
    v_xor_b32 v234, {f32(-1.0)}, v26
    v_lshlrev_b32 v26, 31, v23
    v_xor_b32 v235, v233, v26
    v_lshl_add_u32 v27, v1, 2, v3
    v_add_u32 v27, {MB}, v27""")
    for t in range(5):
        for k in range(5):
            r = 28 + ((t*5+k) % 4) * 3
            if split and t*5+k == split[0]: split[1]()
            a(f"v_fma_f32 v{r}, v{12+t}, v{18+k}, v17")
            a(f"v_add_f32 v{r+1}, v{r}, v{12+t}")
            a(f"v_cos_f32 v{r}, v{r}")
            a(f"v_cos_f32 v{r+1}, v{r+1}")
            if vmq: vm(*vmq.pop(0))
            a(f"v_cvt_pk_bf16_f32 v{r+2}, v{r}, v{r+1}")
            a(f"ds_write_b32 v27, v{r+2} offset:{(t*5+k)*1024}")
    assert not vmq
def k1_f64():
    a(f"v_lshl_add_u32 v28, v1, 4, v8\nv_cvt_f32_u32 v28, v28\nv_mul_f32 v28, {f32(1.0/64)}, v28")
    a("v_lshlrev_b32 v29, 4, v4\nv_cvt_f32_u32 v29, v29\nv_mul_f32 v29, v29, v28\nv_add_f32 v36, v28, v28")
    for p in range(2):
        for jj in range(4):
            a(f"s_mov_b32 s44, {f32(float(p + 4*jj))}")
            a(f"v_fma_f32 v30, v28, s44, v29")
            a(f"v_add_f32 v31, v30, v36")
            a(f"v_cos_f32 v32, v30\nv_cos_f32 v33, v31\nv_sin_f32 v34, v30\nv_sin_f32 v35, v31")
            a(f"v_cvt_pk_bf16_f32 v{200+4*p+jj}, v32, v33")
            a(f"v_cvt_pk_bf16_f32 v{208+4*p+jj}, -v34, -v35")
    for j in range(4): a(f"v_mov_b32 v{108+j}, 0x3f803f80")
    a("v_mul_u32_u24 v10, 80, v4")
def k1_mbread(MB):
    a(f"v_add_u32 v27, {MB}, v3")
    for f in range(25): a(f"ds_read_b128 a[{4*f}:{4*f+3}], v27 offset:{f*1024}")
def k1_main(layer, GT, sb, xq=None, ZSCR=None):
    XF = lambda k: 120 + 4*k if layer else 216 + (k % 4) * 4
    ACC = lambda q, t: 20 + (q*5+t)*4
    def xread(k):
        wait_tags({("x", k | 1 if layer == 0 else k)})
        if layer == 0: a(f"ds_read_b128 v[{XF(k)}:{XF(k)+3}], v{5 if k & 1 else 9} offset:{2048*(k >> 1)}")
    xq = xq or []
    for _ in range(int(OPT.get("k1pre", 8)) if layer else 0):
        if xq: vm(*xq.pop(0))
    a("s_waitcnt lgkmcnt(0)")
    if layer == 0:
        xread(0); st(sb); xread(1)
    for k in range(20):
        q, kk = divmod(k, 5)
        if layer == 0:
            if k + 2 < 20: xread(k + 2); a("s_waitcnt lgkmcnt(2)")
            else: a(f"s_waitcnt lgkmcnt({19 - k})")
        else:
            xread(k)
            if k == 0: st(sb)
        x = f"v[{XF(k)}:{XF(k)+3}]"
        for t in range(5):
            c = f"v[{ACC(q,t)}:{ACC(q,t)+3}]"
            a(f"v_mfma_f32_16x16x32_bf16 {c}, {x}, a[{4*(t*5+kk)}:{4*(t*5+kk)+3}], {'0' if kk == 0 else c}")
            if t in (0, 3) and xq: vm(*xq.pop(0))
        a(f"v_mfma_f32_16x16x32_bf16 v[100:103], {x}, v[108:111], {'0' if k == 0 else 'v[100:103]'}")
        a(f"v_mfma_f32_16x16x32_bf16 v[104:107], {x}, {x}, {'0' if k == 0 else 'v[104:107]'}")
    st(sb + 1)
    for t in range(5):
        for i in range(4):
            a(f"v_fmac_f32 v{ACC(0,t)+i}, v232, v{ACC(2,t)+i}")
            a(f"v_fmac_f32 v{ACC(1,t)+i}, v232, v{ACC(3,t)+i}")
        if t == 1:
            for i in range(4): a(f"ds_bpermute_b32 v{112+i}, v10, v{104+i} offset:{4*i}")
    a("s_waitcnt lgkmcnt(0)")
    ln_scalars([(100+i, 112+i) for i in range(4)])
    for i in range(4): a(f"v_rcp_f32 v{112+i}, v{112+i}")
    a("s_bitcmp1_b32 s24, 0\ns_cselect_b32 s44, 0x80000000, 0\nv_and_b32 v116, s44, v232")
    for i in range(4): a(f"v_xor_b32 v{112+i}, v116, v{112+i}")
    for t in range(5):
        sg = 235 if t == 4 else (233 if t % 2 == 0 else 234)
        for i in range(4):
            a(f"v_fmac_f32_dpp v{ACC(0,t)+i}, v{ACC(1,t)+i}, v{sg} quad_perm:[1,0,2,3] row_mask:0xf bank_mask:0xf")
    a(f"v_mul_u32_u24 v6, 144, v8\nv_lshlrev_b32 v7, 3, v4\nv_add3_u32 v6, v6, v7, {GT if GT <= 64 else 's45'}" if False else
      f"s_mov_b32 s45, {GT}\nv_mul_u32_u24 v6, 144, v8\nv_lshlrev_b32 v7, 3, v4\nv_add3_u32 v6, v6, v7, s45\ns_lshl_b32 s44, s32, 5\nv_add_u32 v9, s44, v6")
    for t in range(5):
        for i in range(4):
            a(f"v_mul_f32 v{ACC(0,t)+i}, v{ACC(0,t)+i}, v{112+i}")
        a(f"v_cvt_pk_bf16_f32 v{ACC(1,t)}, v{ACC(0,t)}, v{ACC(0,t)+1}")
        a(f"v_cvt_pk_bf16_f32 v{ACC(1,t)+1}, v{ACC(0,t)+2}, v{ACC(0,t)+3}")
        a(f"ds_write_b64 v9, v[{ACC(1,t)}:{ACC(1,t)+1}] offset:{t*16*144}")
    a(f"v_add_u32 v6, v6, v7")
    a("s_waitcnt lgkmcnt(0)\ns_barrier")
    st(sb + 2)
    for t in range(5):
        for p in range(2):
            r = 120 + (t*2+p)*4
            a(f"ds_read_b128 v[{r}:{r+3}], v6 offset:{t*16*144 + 64*p}")
    ZL = ZSCR is not None
    if ZL:
        a(f"s_mul_i32 s45, s32, 2560\ns_add_u32 s45, s45, {ZSCR}\nv_mul_u32_u24 v10, 160, v8\nv_add_u32 v10, s45, v10\nv_add_u32 v12, s45, v3")
    else:
        a(f"v_lshl_add_u32 v10, v1, 4, v8\nv_mul_u32_u24 v10, 160, v10")
    a("v_lshl_add_u32 v11, v4, 2, v10\nv_lshl_add_u32 v10, v4, 4, v10")
    a(f"s_mul_i32 s44, s23, 81920\ns_mul_i32 s45, s24, 10240\ns_add_u32 s44, s44, s45\ns_add_u32 s44, s44, {Z_OFF(layer)}")
    if ZL: a("s_mul_i32 s45, s32, 2560\ns_add_u32 s44, s44, s45")
    T1 = lambda t: 20 + t*8
    T2 = lambda t: 24 + t*8
    for t in range(5):
        a(f"s_waitcnt lgkmcnt({8 - 2*t})")
        for p in range(2):
            r = 120 + (t*2+p)*4
            a(f"v_mfma_f32_16x16x32_bf16 v[{T1(t)}:{T1(t)+3}], v[{r}:{r+3}], v[{200+4*p}:{203+4*p}], {'0' if p == 0 else f'v[{T1(t)}:{T1(t)+3}]'}")
            a(f"v_mfma_f32_16x16x32_bf16 v[{T2(t)}:{T2(t)+3}], v[{r}:{r+3}], v[{208+4*p}:{211+4*p}], {'0' if p == 0 else f'v[{T2(t)}:{T2(t)+3}]'}")
    for t in range(5):
        b = 76 + 4*(t & 1)
        a(f"v_sub_f32 v{b}, v{T1(t)}, v{T2(t)+1}")
        a(f"v_sub_f32 v{b+1}, v{T1(t)+2}, v{T2(t)+3}")
        a(f"v_add_f32 v{b+2}, v{T2(t)}, v{T1(t)+1}")
        a(f"v_add_f32 v{b+3}, v{T2(t)+2}, v{T1(t)+3}")
        a(f"v_cvt_pk_bf16_f32 v{60+t}, v{b}, v{b+1}")
        a(f"v_cvt_pk_bf16_f32 v{68+t}, v{b+2}, v{b+3}")
    zsc = SC if layer else OPT.get("asc", "").replace("+", " ")
    if ZL:
        a("ds_write_b128 v10, v[60:63]\nds_write_b128 v10, v[68:71] offset:80\nds_write_b32 v11, v64 offset:64\nds_write_b32 v11, v72 offset:144")
        a("s_waitcnt lgkmcnt(0)")
        for j in range(3): a(f"ds_read_b128 v[{84+4*j}:{87+4*j}], v12 offset:{1024*j}")
        for j in range(3):
            a(f"s_waitcnt lgkmcnt({2-j})")
            if j == 2: a("s_mov_b32 exec_hi, 0")
            vm(f"buffer_store_dwordx4 v[{84+4*j}:{87+4*j}], v3, s[8:11], s44 offen offset:{1024*j} {zsc}", ("s", 3))
        a("s_mov_b32 exec_hi, -1")
    else:
        vm(f"buffer_store_dwordx4 v[60:63], v10, s[8:11], s44 offen {zsc}", ("s", 3))
        vm(f"buffer_store_dwordx4 v[68:71], v10, s[8:11], s44 offen offset:80 {zsc}", ("s", 3))
        vm(f"buffer_store_dword v64, v11, s[8:11], s44 offen offset:64 {zsc}", ("s", 3))
        vm(f"buffer_store_dword v72, v11, s[8:11], s44 offen offset:144 {zsc}", ("s", 3))
    st(sb + 3)

def gen_A():
    name = "fa_kernel"
    GT, MB, PP, XS = 0, 11520, 37120, 78080
    LDS = XS + 81920
    begin(name, 256)
    a("s_load_dwordx2 s[4:5], s[0:1], 88")
    a("s_load_dwordx2 s[6:7], s[0:1], 0")
    a("s_load_dwordx4 s[16:19], s[0:1], 48")
    a("s_load_dwordx2 s[26:27], s[0:1], 64")
    decode_theta(); lane_ids()
    a(f"""v_xor_b32 v5, v4, v2
    v_and_b32 v5, 7, v5
    v_lshlrev_b32 v5, 4, v5
    v_lshrrev_b32 v6, 3, v2
    v_mul_u32_u24 v9, 81920, v6
    v_add_u32 v9, v9, v5
    v_xor_b32 v5, 64, v9
    v_add_u32 v5, {8*81920}, v5
    s_lshr_b32 s33, s32, 1
    s_lshl_b32 s33, s33, 5
    s_add_u32 s33, s33, s23
    s_and_b32 s34, s32, 1
    s_lshl_b32 s34, s34, 10
    s_add_u32 s33, s33, s34
    s_mul_i32 s33, s33, 1280
    s_mul_i32 s35, s32, 20480
    s_add_u32 s35, s35, {XS}""")
    a(f"""s_and_b32 s38, s2, 7
    s_lshr_b32 s37, s2, 3
    v_lshrrev_b32 v10, 3, v2
    v_mul_u32_u24 v10, 3072, v10
    v_and_b32 v11, 7, v2
    v_lshl_add_u32 v11, v11, 4, v10
    s_mul_i32 s40, s38, {80*3072}
    s_and_b32 s41, s32, 1
    s_mul_i32 s41, s41, {40*3072}
    s_add_u32 s40, s40, s41
    s_lshl_b32 s41, s37, 7
    s_add_u32 s40, s40, s41
    s_mul_i32 s42, s32, 5120
    s_add_u32 s42, s42, {PP}""")
    def xissue():
        a("s_waitcnt lgkmcnt(0)")
        srd(8, "s4", "s5", WS_BYTES); srd(12, "s6", "s7", XBYTES)
        st(8)
        for k in range(10): vm(*xd[k])
        st(9)
    a("""s_and_b32 s34, s24, 1
    s_mul_i32 s34, s34, 640
    s_add_u32 s39, s33, 640
    s_sub_u32 s39, s39, s34
    s_add_u32 s33, s33, s34""")
    xd = [(f"s_add_u32 m0, s35, {1024*k - 128*((k % 10) >> 1)}\nbuffer_load_dwordx4 v{41 if k & 1 else 40}, s[12:15], s{33 if k < 10 else 39} offen offset:{128*((k % 10) >> 1)} lds", ("x", k)) for k in range(20)]
    a("v_mov_b32 v40, v9\nv_mov_b32 v41, v5")
    k1_tables(MB, [], (int(OPT.get("asplit", 10)), xissue))
    k1_f64()
    a("""v_lshrrev_b32 v29, 1, v8
    v_xor_b32 v29, v29, v4
    v_lshlrev_b32 v29, 4, v29
    v_lshl_add_u32 v9, v8, 7, v29
    v_xor_b32 v5, 64, v9
    v_add_u32 v9, s35, v9
    v_add_u32 v5, s35, v5""")
    st(1)
    a("s_waitcnt lgkmcnt(0)\ns_barrier")
    k1_mbread(MB)
    for k in range(10, 20): vm(*xd[k])
    st(10)
    base = list(issued)
    a("s_cmp_ge_u32 s2, 192")
    a(f"s_cbranch_scc1 {name}_wdld")
    for role in (0, 1):
        issued[:] = base; pq = []
        if role == 0:
            a("s_cmp_lt_u32 s32, 2\ns_cselect_b32 s48, s16, s18\ns_cselect_b32 s49, s17, s19")
            a(f"s_mov_b32 s50, {WBYTES}\ns_mov_b32 s51, 0x20000")
            for i in range(5):
                pq.append((f"s_add_u32 m0, s42, {1024*i}\nbuffer_load_dwordx4 v11, s[48:51], s40 offen lds" + (f"\ns_add_u32 s40, s40, {8*3072}" if i < 4 else ""), ("p", 0)))
        else:
            a(f"{name}_wdld:")
            a(f"""s_sub_u32 s36, s2, 192
            s_mul_i32 s36, s36, 3
            s_min_u32 s41, s32, 2
            s_add_u32 s36, s36, s41
            s_mul_i32 s40, s36, 10240
            s_mul_i32 s42, s32, 10240
            s_add_u32 s42, s42, {PP}""")
            srd(48, "s26", "s27", WBYTES)
            for i in range(10):
                t = "s_add_u32 s40, s40, 4096\n" if i in (4, 8) else ""
                if i % 4 == 0: t += f"s_add_u32 m0, s42, {(i // 4) * 4096}\n"
                pq.append((t + f"buffer_load_dwordx4 v3, s[48:51], s40 offen offset:{1024*(i % 4)} lds", ("p", 0)))
        if int(OPT.get("ppfirst", 0)):
            while pq: vm(*pq.pop(0))
        st(2)
        k1_main(0, GT, 3, pq, MB if int(OPT.get("zlin", 1)) else None)
        wait_tags({("p", 0)}); a("s_barrier")
        st(7)
        if role == 0: a(f"s_branch {name}_join")
    a(f"{name}_join:")
    a(f"""v_mov_b32 v12, 0
    v_lshrrev_b32 v13, 5, v0
    v_lshlrev_b32 v13, 15, v13
    v_and_b32 v14, 31, v0
    v_lshl_add_u32 v13, v14, 2, v13
    s_lshl_b32 s44, s2, 7
    s_add_u32 s44, s44, {FL_OFF}
    v_cmp_gt_u32 vcc, 0xe0, v0
    s_and_saveexec_b64 s[46:47], vcc
    s_cbranch_execz {name}_nofl
    buffer_store_dword v12, v13, s[8:11], s44 offen
    {name}_nofl:
    s_mov_b64 exec, s[46:47]""")
    a("""v_bfe_u32 v13, v2, 2, 2          ; r
    v_and_b32 v14, 3, v2              ; c
    s_cmp_ge_u32 s2, 192""")
    a(f"s_cbranch_scc1 {name}_wdpp")
    a(f"""v_lshrrev_b32 v15, 1, v4
    v_lshl_add_u32 v12, v15, 3, v13
    v_lshlrev_b32 v12, 7, v12
    v_lshrrev_b32 v15, 1, v14
    v_mul_u32_u24 v15, 10240, v15
    v_add_u32 v12, v12, v15
    v_and_b32 v15, 1, v14
    v_lshl_add_u32 v12, v15, 4, v12
    v_and_b32 v15, 1, v4
    v_lshl_add_u32 v12, v15, 3, v12
    s_lshl_b32 s45, s32, 5
    v_add_u32 v12, s45, v12""")
    for kk in range(5):
        for s in range(2):
            a(f"ds_read_b64_tr_b16 v[{120+4*kk+2*s}:{121+4*kk+2*s}], v12 offset:{PP + (16*kk + 4*s)*128}")
    a(f"""s_lshl_b32 s45, s37, 2
    s_add_u32 s45, s45, s32
    s_mul_i32 s47, s45, 43
    s_lshr_b32 s47, s47, 8            ; cb
    s_mul_i32 s48, s47, 6
    s_sub_u32 s48, s45, s48           ; mu
    s_mul_i32 s49, s47, 245760
    s_add_u32 s49, s49, {WP_OFF}
    s_mul_i32 s50, s48, {40-KA}
    s_add_u32 s50, s50, {5*KA}
    s_mul_i32 s51, s38, 5
    s_waitcnt lgkmcnt(0)""")
    for kk in range(5):
        a(f"""s_add_u32 s52, s51, {kk}
        s_mul_i32 s53, s52, 6
        s_add_u32 s53, s53, s48
        s_add_u32 s54, s52, s50
        s_cmp_lt_u32 s52, {KA}
        s_cselect_b32 s53, s53, s54
        s_lshl_b32 s53, s53, 10
        s_add_u32 s53, s53, s49""")
        a(f"buffer_store_dwordx4 v[{120+4*kk}:{123+4*kk}], v3, s[8:11], s53 offen {ASC}")
        a(f"v_mfma_f32_32x32x16_bf16 v[20:35], v[{120+4*kk}:{123+4*kk}], v[108:111], {'0' if kk == 0 else 'v[20:35]'}")
    a(f"""s_mul_i32 s52, s38, 96
    s_add_u32 s52, s52, s45
    s_lshl_b32 s52, s52, 7
    s_add_u32 s52, s52, {CS_OFF}
    v_lshrrev_b32 v12, 5, v2
    v_lshlrev_b32 v12, 4, v12
    s_mov_b32 s54, 1
    s_mov_b32 s55, 1
    s_mov_b64 exec, s[54:55]""")
    for j in range(4): a(f"buffer_store_dwordx4 v[{20+4*j}:{23+4*j}], v12, s[8:11], s52 offen offset:{32*j}")
    a("s_mov_b64 exec, -1")
    a(f"s_branch {name}_fin")
    a(f"{name}_wdpp:")
    a("s_cmp_eq_u32 s32, 3")
    a(f"s_cbranch_scc1 {name}_fin")
    a(f"""v_mul_u32_u24 v5, 1280, v13
    v_add_u32 v5, s42, v5
    s_lshr_b32 s44, s36, 2
    s_mul_i32 s44, s44, 5120
    s_and_b32 s45, s36, 3
    s_lshl_b32 s45, s45, 8
    s_add_u32 s44, s44, s45
    s_add_u32 s44, s44, {WDP_OFF}
    s_mov_b32 s45, {245760 - 5*1024}
    v_lshlrev_b32 v7, 4, v8""")
    for pi in range(10):
        a(f"""v_add_u32 v10, {4*pi}, v4
        v_mul_u32_u24 v11, 52, v10
        v_lshrrev_b32 v11, 8, v11
        v_mul_u32_u24 v12, 5, v11
        v_sub_u32 v12, v10, v12
        v_lshrrev_b32 v15, 1, v12
        v_lshlrev_b32 v15, 3, v15
        v_and_b32 v16, 1, v12
        v_add_u32 v15, v15, v16
        v_lshl_add_u32 v16, v14, 1, v15
        v_add_u32 v17, v14, v15
        v_cmp_gt_u32 vcc, 4, v12
        v_mul_u32_u24 v18, 20, v11
        v_mul_lo_u32 v11, v11, s45
        v_cndmask_b32 v16, v17, v16, vcc
        v_add_u32 v16, v16, v18
        v_lshl_add_u32 v16, v16, 3, v5
        v_lshl_add_u32 v11, v10, 10, v11
        v_add_u32 v{20+pi}, v11, v7""")
        for p in range(2):
            a(f"ds_read_b64_tr_b16 v[{120+pi*4+2*p}:{121+pi*4+2*p}], v16 offset:{p*5120}")
        if pi == 4: a("s_waitcnt lgkmcnt(0)")
    a("s_waitcnt lgkmcnt(0)")
    for pi in range(10):
        a(f"buffer_store_dwordx4 v[{120+pi*4}:{123+pi*4}], v{20+pi}, s[8:11], s44 offen {ASC}")
    end(name, 240, agpr=100, vt=112)
    return name, LDS

def wops(c):
    out = []
    for i in range(6):
        t = ""
        if i == 0: t += f"s_add_u32 s27, s25, {c*SLOT}\ns_add_u32 m0, s26, {(c % NS)*SLOT}\n"
        if i == 4: t += f"s_add_u32 s27, s27, 4096\ns_add_u32 m0, s26, {(c % NS)*SLOT + 4096}\n"
        t += f"buffer_load_dwordx4 v3, s[8:11], s27 offen offset:{1024*(i % 4)} lds"
        out.append((t, ("W", c)))
    return out
ROT = int(OPT.get("rotw", 1)); ROTD = int(OPT.get("rotd", 0))
def wops_rot(c):
    out = []
    for i in range(6):
        t = ""
        if i == 0:
            if c: t += f"s_add_u32 s59, s59, {SLOT}\ns_cmp_ge_u32 s59, {5*SLOT}\ns_cselect_b32 s59, 0, s59\n"
            t += f"s_add_u32 s27, s25, s59\ns_add_u32 s28, s26, s59\ns_mov_b32 m0, s28\n"
        if i == 4: t += f"s_add_u32 s27, s27, 4096\ns_add_u32 m0, s28, 4096\n"
        t += f"buffer_load_dwordx4 v3, s[8:11], s27 offen offset:{1024*(i % 4)} lds"
        out.append((t, ("W", c)))
    return out
def krot(j):
    if j >= 10: return f"s_and_b32 s18, s19, 1\ns_xor_b32 s18, s18, {j}\n"
    g = 5*(j // 5)
    return f"s_add_u32 s18, s19, {j}\ns_sub_u32 s17, s18, 5\ns_cmp_ge_u32 s18, {g+5}\ns_cselect_b32 s18, s17, s18\n"
def WDR(f):
    if f < 24: r = 160 + 4*f; return f"a[{r}:{r+3}]"
    if f == 24: return "v[192:195]"
    if f < 49: r = 4*(f - 25); return f"a[{r}:{r+3}]"
    r = 196 + 4*(f - 49); return f"v[{r}:{r+3}]"
ORD = [0, 3, 6, 9, 1, 4, 7, 10, 2, 5, 8, 11]
def wdops(f0, f1):
    out = []
    for f in range(f0, f1):
        k, m = divmod(f, 5)
        t = ""
        if m == 0 or (f == f0 and m < 4): t = f"s_add_u32 s30, s31, {ORD[k]*5120}\n"
        if m == 4: t = f"s_add_u32 s30, s31, {ORD[k]*5120 + 4096}\n"
        out.append((t + f"buffer_load_dwordx4 {WDR(f)}, v3, s[8:11], s30 offen offset:{1024*(m % 4)}", ("D", f)))
    return out

def stream_bases():
    a(f"""s_mul_i32 s25, s21, 245760
    s_mul_i32 s26, s32, 6144
    s_add_u32 s25, s25, s26
    s_add_u32 s25, s25, {WP_OFF}
    s_mul_i32 s31, s24, 245760
    s_mul_i32 s30, s32, 61440
    s_add_u32 s31, s31, s30
    s_add_u32 s31, s31, {WDP_OFF}
    s_mul_i32 s29, s21, 768
    s_add_u32 s29, s29, {CS_OFF}
    s_mov_b32 s19, 0""")

def s2_setup(layer):
    ZS = 5*SLOT
    a("""s_and_b32 s33, s21, 7
    s_lshr_b32 s34, s21, 3
    s_and_b32 s35, s32, 1
    s_xor_b32 s34, s34, s35
    s_sub_u32 s36, 32, s20
    s_cmp_eq_u32 s20, 0
    s_cselect_b32 s36, 16, s36
    s_cmp_eq_u32 s34, 0
    s_cselect_b32 s36, s20, s36
    s_lshl_b32 s37, s35, 5
    s_add_u32 s36, s36, s37           ; k
    s_sub_u32 s37, 64, s36
    s_and_b32 s37, s37, 63
    s_cmp_lt_u32 s32, 2
    s_cselect_b32 s37, s36, s37       ; ksrc
    s_cselect_b32 s39, -2, 0
    s_lshl_b32 s38, s20, 1
    s_add_u32 s38, s38, s34
    s_lshl_b32 s38, s38, 1
    s_add_u32 s38, s38, s35
    s_lshl_b32 s38, s38, 1""")
    for i in range(5):
        a(f"""v_add_u32 v20, {64*i}, v2
        v_mul_u32_u24 v21, 13108, v20
        v_lshrrev_b32 v21, 17, v21
        v_mul_u32_u24 v22, {81920 - 160}, v21
        v_lshl_add_u32 v{10+i}, v20, 4, v22""")
    a(f"""v_lshrrev_b32 v20, 1, v2
    v_mul_u32_u24 v20, 81920, v20
    v_and_b32 v21, 1, v2
    v_mul_u32_u24 v21, 80, v21
    v_add_u32 v47, v20, v21
    s_mul_i32 s40, s37, 160
    s_add_u32 s40, s40, s39
    s_mul_i32 s41, s33, 10240
    s_add_u32 s40, s40, s41
    s_add_u32 s40, s40, {Z_OFF(layer)}
    s_sub_u32 s41, s40, {10240 - 80}
    s_mul_i32 s42, s32, 6144
    s_add_u32 s42, s42, {ZS}
    s_mul_i32 s43, s33, 5
    s_sub_u32 s44, 75, s43
    s_cmp_lt_u32 s32, 2
    s_cselect_b32 s43, s43, s44
    v_lshlrev_b32 v5, 4, v8
    v_lshl_add_u32 v5, v4, 3, v5
    s_mul_i32 s44, s38, 20480
    s_lshl_b32 s45, s43, 8
    s_add_u32 s44, s44, s45""")
    if layer == 0:
        a("""v_mul_u32_u24 v6, 81920, v8
        v_lshl_add_u32 v7, v4, 3, v6
        v_lshl_add_u32 v6, v4, 4, v6
        s_mul_i32 s46, s36, 1280
        s_lshl_b32 s45, s43, 4
        s_add_u32 s46, s46, s45
        s_add_u32 s47, s46, 1310720""")
    else:
        a(f"s_add_u32 s46, s44, {X2_OFF}\ns_add_u32 s47, s46, 20480")
    a(f"""v_lshlrev_b32 v36, 6, v8
    v_add_u32 v36, s36, v36
    v_cvt_f32_u32 v36, v36
    v_mul_f32 v36, {f32(1.0/2048)}, v36
    v_lshlrev_b32 v38, 2, v4
    v_cvt_f32_u32 v38, v38
    s_cmp_lt_u32 s32, 2
    s_cselect_b32 s48, 0, 0x80000000""")
def s2_fgen(nt):
    if nt: a("v_add_f32 v36, 0.5, v36")
    a("v_mul_f32 v37, v38, v36")
    for p in range(2):
        for jj in range(4):
            r = 40 + (jj & 1)*3
            a(f"s_mov_b32 s49, {f32(float(16*p + jj))}")
            a(f"v_fma_f32 v{r}, v36, s49, v37")
            a(f"v_cos_f32 v{r+1}, v{r}\nv_sin_f32 v{r+2}, v{r}")
            a(f"v_xor_b32 v{r+2}, s48, v{r+2}")
            a(f"v_cvt_pk_bf16_f32 v{20+8*nt+4*p+jj}, v{r+1}, v{r+2}")
def s2_setup2(layer):
    a("""v_bfe_u32 v15, v2, 2, 2
    v_and_b32 v16, 3, v2
    v_lshl_add_u32 v17, v4, 3, v15
    v_mul_u32_u24 v17, 80, v17
    v_add_u32 v17, s42, v17
    v_and_b32 v18, 1, v16
    v_add_u32 v96, s42, v3
    v_mul_u32_u24 v97, 80, v2
    v_add_u32 v97, s42, v97""")
    a(f"""s_lshl_b32 s50, s38, 11
    s_lshl_b32 s51, s33, 8
    s_add_u32 s50, s50, s51
    s_lshr_b32 s51, s32, 1
    s_lshl_b32 s51, s51, 7
    s_add_u32 s50, s50, s51
    s_add_u32 s50, s50, {ST_OFF(layer)}
    s_add_u32 s44, s44, {X1_OFF(layer)}
    s_add_u32 s45, s44, 20480
    v_lshlrev_b32 v9, 3, v8
    v_lshl_add_u32 v9, v4, 11, v9
    v_mov_b32 v39, 0x3f803f80
    s_mov_b32 s52, -1
    s_mov_b32 s53, 0""")
S2XF = lambda nt: 100 + 6*nt
def s2_loads(layer):
    sc = SC if layer else ""
    for i in range(5): vm(f"buffer_load_dwordx4 v[{120+4*i}:{123+4*i}], v{10+i}, s[8:11], s40 offen {sc}", ("z", layer))
    vm(f"buffer_load_ushort v98, v47, s[8:11], s41 offen {sc}", ("z", layer))
    XF = S2XF
    for nt in range(2):
        if layer == 0:
            vm(f"buffer_load_dwordx4 v[{XF(nt)}:{XF(nt)+3}], v6, s[12:15], s{46+nt} offen", ("r", 0))
            vm(f"buffer_load_dwordx2 v[{XF(nt)+4}:{XF(nt)+5}], v7, s[12:15], s{46+nt} offen offset:64", ("r", 0))
        else:
            vm(f"buffer_load_dwordx4 v[{XF(nt)}:{XF(nt)+3}], v3, s[8:11], s{46+nt} offen {sc}", ("r", 1))
            vm(f"buffer_load_dwordx2 v[{XF(nt)+4}:{XF(nt)+5}], v5, s[8:11], s{46+nt} offen offset:1024 {sc}", ("r", 1))
def s2_compute(name, layer):
    XF = S2XF
    ACC = lambda nt, tl: 48 + (nt*3+tl)*4
    AF = lambda tl, p: 72 + (tl*2+p)*4
    wait_tags({("z", layer)})
    for i in range(5): a(f"ds_write_b128 v96, v[{120+4*i}:{123+4*i}] offset:{1024*i}")
    a("s_cmp_ge_u32 s32, 2")
    a(f"s_cbranch_scc1 {name}_right")
    base = list(issued)
    for right in (0, 1):
        issued[:] = base
        if right:
            a(f"{name}_right:")
            a("v_lshlrev_b32 v16, 4, v16\nv_sub_u32 v19, v17, v16\nv_add_u32 v19, 64, v19\nv_lshlrev_b32 v18, 3, v18\nv_sub_u32 v46, v17, v18\nv_add_u32 v46, 8, v46")
        else:
            a("ds_write_b16 v97, v98")
            a("v_lshl_add_u32 v19, v16, 4, v17\nv_lshl_add_u32 v46, v18, 3, v17\nv_add_u32 v46, 64, v46")
        for tl in range(3):
            for p in range(2):
                for s in range(2):
                    off = (32*p + 4*s)*80 + (0 if tl == 2 else ((8 - 8*tl) if right else 8*tl))
                    r = AF(tl, p) + 2*s
                    a(f"ds_read_b64_tr_b16 v[{r}:{r+1}], v{46 if tl == 2 else 19} offset:{off}")
        wait_tags({("r", layer)})
        for nt in range(2):
            for dw in range(6):
                tl, lo = dw >> 1, (dw & 1) * 2
                i0, i1 = (3 - lo, 2 - lo) if right else (lo, lo + 1)
                a(f"v_lshlrev_b32 v{ACC(nt,tl)+i0}, 16, v{XF(nt)+dw}")
                a(f"v_and_b32 v{ACC(nt,tl)+i1}, 0xffff0000, v{XF(nt)+dw}")
        if not right: a(f"v_mov_b32 v40, v{ACC(0,0)}\nv_mov_b32 v41, v{ACC(1,0)}")
        for tl in range(3):
            a(f"s_waitcnt lgkmcnt({8 - 4*tl})")
            for p in range(2):
                for nt in range(2):
                    c = f"v[{ACC(nt,tl)}:{ACC(nt,tl)+3}]"
                    a(f"v_mfma_f32_16x16x32_bf16 {c}, v[{AF(tl,p)}:{AF(tl,p)+3}], v[{20+8*nt+4*p}:{23+8*nt+4*p}], {c}")
        if not right:
            a("s_cmp_eq_u32 s33, 0\ns_cselect_b32 s54, 0xffff, 0\ns_mov_b32 s55, 0")
            a(f"v_cndmask_b32 v{ACC(0,0)}, v{ACC(0,0)}, v40, s[54:55]")
            a(f"v_cndmask_b32 v{ACC(1,0)}, v{ACC(1,0)}, v41, s[54:55]")
        for nt in range(2):
            for dw in range(6):
                tl, lo = dw >> 1, (dw & 1) * 2
                i0, i1 = (3 - lo, 2 - lo) if right else (lo, lo + 1)
                a(f"v_cvt_pk_bf16_f32 v{XF(nt)+dw}, v{ACC(nt,tl)+i0}, v{ACC(nt,tl)+i1}")
            vm(f"buffer_store_dwordx4 v[{XF(nt)}:{XF(nt)+3}], v3, s[8:11], s{44+nt} offen {SC}", ("s", 10 + layer))
        a("s_mov_b64 exec, s[52:53]")
        for nt in range(2):
            vm(f"buffer_store_dwordx2 v[{XF(nt)+4}:{XF(nt)+5}], v5, s[8:11], s{44+nt} offen offset:1024 {SC}", ("s", 10 + layer))
        a("s_mov_b64 exec, -1")
        for nt in range(2):
            for j in range(2):
                a(f"v_cndmask_b32 v{72+2*nt+j}, 0, v{XF(nt)+4+j}, s[52:53]")
        for nt in range(2):
            for dw in range(6):
                src = XF(nt)+dw if dw < 4 else 72+2*nt+dw-4
                c0 = "0" if dw == 0 else f"v{40+2*nt}"; c1 = "0" if dw == 0 else f"v{41+2*nt}"
                a(f"v_dot2_f32_bf16 v{40+2*nt}, v{src}, v39, {c0}")
                a(f"v_dot2_f32_bf16 v{41+2*nt}, v{src}, v{src}, {c1}")
        reduce_lanes([40, 41, 42, 43], 76)
        a("s_mov_b64 exec, 0xffff0000\nv_mov_b32 v40, v42\nv_mov_b32 v41, v43\ns_mov_b64 exec, s[52:53]")
        vm(f"buffer_store_dwordx2 v[40:41], v9, s[8:11], s50 offen {SC}", ("s", 10 + layer))
        a("s_mov_b64 exec, -1")
        if not right: a(f"s_branch {name}_s2done")
    a(f"{name}_s2done:")
def cs_loads():
    return [(f"buffer_load_dword v{112+p}, v99, s[8:11], s29 offen" + ("\ns_add_u32 s29, s29, 12288" if p < 7 else ""), ("c", 0)) for p in range(8)]
def cs_final(name):
    wait_tags({("c", 0)})
    a(f"""v_add_f32 v112, v112, v113
    v_add_f32 v114, v114, v115
    v_add_f32 v116, v116, v117
    v_add_f32 v118, v118, v119
    v_add_f32 v112, v112, v114
    v_add_f32 v116, v116, v118
    v_add_f32 v112, v112, v116
    v_cvt_pk_bf16_f32 v113, v112, v112
    v_lshlrev_b32 v113, 16, v113
    v_sub_f32 v113, v112, v113
    v_cvt_pk_bf16_f32 v112, v112, v113
    v_mov_b32 v113, 0
    v_mov_b32 v114, 0
    v_mov_b32 v115, 0
    v_lshlrev_b32 v99, 2, v99
    v_add_u32 v99, {CSL}, v99
    s_cmp_eq_u32 s32, 3
    s_cbranch_scc1 {name}_nocs
    ds_write_b128 v99, v[112:115]
    {name}_nocs:
    s_waitcnt lgkmcnt(0)""")

def glu1_phase(layer):
    D = int(OPT.get("g1d", 8)); R = D + 2
    AFB = 112; OUT = AFB + 4*R; SV = OUT + 8
    assert SV + 16 <= 192
    a(f"""s_lshl_b32 s33, s20, 2
    s_add_u32 s33, s33, s32           ; T
    s_mul_i32 s34, s33, 40960
    s_add_u32 s34, s34, {X1_OFF(layer)}
    s_mul_i32 s40, s33, 98304
    s_mul_i32 s41, s21, 3072
    s_add_u32 s40, s40, s41
    s_add_u32 s40, s40, {H_OFF(layer)}
    s_lshl_b32 s43, s33, 12
    s_add_u32 s43, s43, {ST_OFF(layer)}
    v_and_b32 v9, 1, v4
    v_lshrrev_b32 v10, 1, v4
    v_lshlrev_b32 v11, 4, v8
    v_lshl_add_u32 v11, v10, 8, v11
    v_mul_u32_u24 v12, 20480, v9
    v_add_u32 v12, v12, v11           ; x voffset
    v_mul_u32_u24 v13, 49152, v9
    v_add_u32 v13, v13, v11           ; h voffset
    v_and_b32 v14, 31, v2
    v_lshlrev_b32 v15, 3, v8
    v_lshl_add_u32 v15, v9, 11, v15
    v_lshl_add_u32 v15, v10, 10, v15
    v_lshlrev_b32 v14, 4, v14
    v_add_u32 v14, {CSL}, v14
    v_add_u32 v5, {2*SLOT}, v3
    v_add_u32 v6, {4*SLOT}, v3
    s_mov_b32 s46, -1
    s_mov_b32 s47, 0""")
    return D, R, AFB, OUT, SV

def glu1_main(layer, P, hooks, shift=0):
    D, R, AFB, OUT, SV = P[:5]
    order = sorted([(wp_pos(k, m), k, m) for k in range(40) for m in range(6)])
    def xop(k):
        t = f"s_add_u32 s39, s34, {k*512}\n" if k % 8 == 0 else ""
        return (t + f"buffer_load_dwordx4 a[{4*k}:{4*k+3}], v12, s[8:11], s39 offen offset:{512*(k % 8)} {SC}", ("X", k))
    slots = {}
    def put(i, op): slots.setdefault(i + shift, []).append(op)
    early = [xop(k) for k in range(4, 8)] + [xop(k) for k in range(8, 40)] + [(f"buffer_load_dwordx2 v[{SV+2*j}:{SV+2*j+1}], v15, s[8:11], s43 offen offset:{128*j} {SC}", ("T", 0)) for j in range(8)]
    for j, op in enumerate(early): put(2*j - (j > 8)*0, op)
    left = list(P[5])
    mid = wops(6) + left[:len(left)//2] + wops(7) + left[len(left)//2:] + wops(8)
    for j, op in enumerate(mid): put(90 + int(j * 53 / len(mid)), op)
    late = wdops(25, 30) + wops(9) + wdops(30, 50)
    for j, op in enumerate(late): put(146 + int(j * float(OPT.get('latesp', 2.5))), op)
    ACC = lambda m: 16 + 16*m
    seq = []
    for i, (p, k, m) in enumerate(order):
        seq.append(("f", i, k, m))
        if k == 39: seq.append(("e", i, 40, m))
    N = len(seq)
    AF = lambda j: AFB + (j % R)*4
    LB = {0: 3, 1: 5, 2: 6}
    def aread(j):
        kind, i, k, m = seq[j]
        if kind == "f":
            c, o = divmod(i, 24); slot = c % NS
            a(f"ds_read_b128 v[{AF(j)}:{AF(j)+3}], v{LB[slot // 2]} offset:{(slot & 1)*SLOT + o*1024}")
        else:
            a(f"ds_read_b128 v[{AF(j)}:{AF(j)+3}], v14 offset:{m*512}")
    CT, SD, XB = SV, SV + 1, SV + 4
    def stats():
        for j in (0, 4, 8, 12): a(f"v_add_f32 v{SV+j}, v{SV+j}, v{SV+j+2}\nv_add_f32 v{SV+j+1}, v{SV+j+1}, v{SV+j+3}")
        for j in (0, 8): a(f"v_add_f32 v{SV+j}, v{SV+j}, v{SV+j+4}\nv_add_f32 v{SV+j+1}, v{SV+j+1}, v{SV+j+5}")
        a(f"v_add_f32 v{SV}, v{SV}, v{SV+8}\nv_add_f32 v{SV+1}, v{SV+1}, v{SV+9}")
        reduce_lanes([SV, SV+1], SV+2, steps=(32,))
        ln_scalars([(SV, SV+1)])
        a(f"v_cvt_pk_bf16_f32 v{SV+2}, -v{SV}, -v{SV}")
        a(f"v_rcp_f32 v{SV}, v{SV+1}")
        a(f"v_cndmask_b32 v{XB}, 0, v{SV+2}, s[46:47]\nv_mov_b32 v{XB+1}, 0\nv_mov_b32 v{XB+2}, 0\nv_mov_b32 v{XB+3}, 0")
        a(f"v_mul_f32 v{SV}, {f32(-1.4426950408889634)}, v{SV}")
    def epi(m):
        A = ACC(m); gi = [0,1,2,3,8,9,10,11]; ui = [4,5,6,7,12,13,14,15]; o = OUT + 4*(m & 1)
        ops = []
        for h in range(2):
            js = range(4*h, 4*h+4)
            for j in js: ops.append(f"v_mul_f32 v{A+gi[j]}, v{CT}, v{A+gi[j]}")
            for j in js: ops.append(f"v_exp_f32 v{A+gi[j]}, v{A+gi[j]}")
            for j in js: ops.append(f"v_fma_f32 v{A+gi[j]}, v{A+gi[j]}, v{SD}, v{SD}")
            for j in js: ops.append(f"v_rcp_f32 v{A+gi[j]}, v{A+gi[j]}")
            for j in js: ops.append(f"v_mul_f32 v{A+gi[j]}, v{A+gi[j]}, v{A+ui[j]}")
            for j in (2*h, 2*h+1): ops.append(f"v_cvt_pk_bf16_f32 v{o+j}, v{A+gi[2*j]}, v{A+gi[2*j+1]}")
        ops.append(f"buffer_store_dwordx4 v[{o}:{o+3}], v13, s[8:11], s40 offen offset:{m*512} {SC}")
        return ops
    for j in range(D): aread(j)
    pend = []; donex = set()
    for j, (kind, i, k, m) in enumerate(seq):
        if kind == "f" and i == 1: st(5)
        if kind == "f" and i == 72: st(6)
        if kind == "f" and i == 144: st(7)
        nxt = j + D
        if nxt < N and seq[nxt][0] == "f" and seq[nxt][1] % 24 == 0:
            wait_tags({("W", seq[nxt][1] // 24)}); a("s_barrier")
        if kind == "f" and k not in donex:
            wait_tags({("X", k)}); donex.add(k)
        if kind == "f" and i == 110:
            wait_tags({("T", 0)}); pend = capture(stats)
        a(f"s_waitcnt lgkmcnt({min(D - 1, N - 1 - j)})")
        cc = f"v[{ACC(m)}:{ACC(m)+15}]"
        b = f"a[{4*k}:{4*k+3}]" if kind == "f" else f"v[{XB}:{XB+3}]"
        a(f"v_mfma_f32_32x32x16_bf16 {cc}, v[{AF(j)}:{AF(j)+3}], {b}, {'0' if k == 0 else cc}")
        if nxt < N: aread(nxt)
        if kind == "f":
            for op in slots.pop(i, []):
                if op[1][0] in OPT.get("g1skip", ""): issued.insert(0, op[1])
                else: vm(*op)
            if k == KA + 1 and m > 0:
                assert not pend
                pend = epi(m - 1)
        for _ in range(3):
            if pend:
                op = pend.pop(0)
                if op.startswith("buffer"): vm(op, ("hs", m - 1))
                elif "V" not in OPT.get("g1skip", ""): a(op)
        if kind == "f" and i in hooks: hooks[i]()
    assert not pend and not slots, (pend, slots)
    st(8)
    hooks["end"]()
    for op in epi(5):
        if op.startswith("buffer"): vm(op, ("hs", 5))
        else: a(op)

def glu2_early(layer):
    for n in range(4):
        a(f"""s_add_u32 s56, s32, {n}
        s_and_b32 s56, s56, 3
        s_lshl_b32 s57, s22, 2
        s_add_u32 s57, s57, s56
        s_mul_i32 s57, s57, 49152
        s_mul_i32 s56, s32, 12288
        s_add_u32 s57, s57, s56
        s_add_u32 s{48+n}, s57, {H_OFF(layer)}""")
    a("""s_lshl_b32 s56, s22, 2
    s_add_u32 s56, s56, s32
    s_mul_i32 s56, s56, 20480
    s_mul_i32 s57, s24, 2560
    s_add_u32 s52, s56, s57""")
def glu2_late(layer):
    a(f"""s_add_u32 s45, s52, {X1_OFF(layer)}
    v_lshrrev_b32 v5, 1, v4
    v_lshlrev_b32 v5, 8, v5
    v_lshl_add_u32 v5, v8, 4, v5
    v_and_b32 v6, 1, v4
    v_lshl_add_u32 v5, v6, 3, v5""")
    for n in range(1, 4):
        a(f"""s_add_u32 s33, s32, {n}
        s_and_b32 s33, s33, 3
        s_lshl_b32 s34, s33, 2
        s_add_u32 s34, s34, s32
        s_mul_i32 s34, s34, 5120
        v_add_u32 v{9+n}, s34, v3
        s_lshl_b32 s34, s32, 2
        s_add_u32 s33, s33, s34
        s_mul_i32 s33, s33, 5120
        v_add_u32 v{12+n}, s33, v3""")
    if layer == 1:
        a("""s_lshr_b32 s33, s32, 1
        s_lshl_b32 s33, s33, 5
        s_add_u32 s33, s33, s23
        s_and_b32 s34, s32, 1
        s_lshl_b32 s34, s34, 10
        s_add_u32 s33, s33, s34
        s_mul_i32 s33, s33, 1280
        s_mul_i32 s34, s24, 160
        s_add_u32 s44, s33, s34
        v_mul_u32_u24 v6, 81920, v8
        v_lshl_add_u32 v7, v4, 3, v6
        v_lshl_add_u32 v6, v4, 4, v6""")
        srd(12, "s98", "s99", XBYTES)
    else:
        a(f"s_add_u32 s44, s52, {X2_OFF}")

def poll_issue(flagv, nfl, tag):
    a(f"s_mov_b64 exec, {hex((1 << nfl) - 1)}")
    vm(f"buffer_load_dword v{flagv}, v{flagv+1}, s[8:11], s59 offen {SC}", tag)
    a("s_mov_b64 exec, -1")
def poll_check(flagv, nfl, tag):
    lab = a.label("chk")
    wait_tags({tag})
    a(f"s_mov_b64 exec, {hex((1 << nfl) - 1)}\nv_cmp_ne_u32 vcc, 1, v{flagv}\ns_mov_b64 exec, -1\ns_cbranch_vccz {lab}")
    await_(nfl, flagv)
    a(f"{lab}:")

def glu2_main(layer, sigB, where):
    def HR(k, n):
        sl = k % 10
        r = 96 + sl*16 + 4*n if sl < 6 else 96 + (sl - 6)*16 + 4*n
        return f"{'v' if sl < 6 else 'a'}[{r}:{r+3}]"
    X = 240
    def ops(k):
        return [(f"s_add_u32 s17, s{48+n}, {ORD[k]*1024}\nbuffer_load_dwordx4 {HR(k,n)}, v3, s[8:11], s17 offen {SC}", ("h", k)) for n in range(4)]
    xops = [(f"buffer_load_dwordx4 v[{X}:{X+3}], v3, s[8:11], s45 offen {SC}", ("x1", 0)), (f"buffer_load_dwordx4 v[{X+4}:{X+7}], v3, s[8:11], s45 offen offset:1024 {SC}", ("x1", 0)),
            (f"buffer_load_dwordx2 v[{X+8}:{X+9}], v5, s[8:11], s45 offen offset:2048 {SC}", ("x1", 0))]
    for k in range(4):
        for o in ops(k): vm(*o)
        if k == int(OPT.get("pi1", 1)):
            where(1); poll_issue(252, 8, ("pb", 2*layer + 1))
    wait_tags({("hs", 5)})
    st(9)
    sigB()
    fill = capture(lambda: glu2_late(layer))
    PC2 = int(OPT.get("pc2", 4))
    plan = {0: ops(4) + ops(5), 1: ops(6) + ops(7), 7: xops}
    plan[PC2] = plan.get(PC2, []) + ops(8) + ops(9); plan[PC2 + 1] = plan.get(PC2 + 1, []) + ops(10) + ops(11)
    PI = {int(OPT.get("pi2", 1)): 2}
    PC = {0: 1, PC2: 2}
    ACC = lambda n, m: 16 + (n*5+m)*4
    DEF = int(OPT.get("g2def", 3))
    def mf(k, n, m):
        c = f"v[{ACC(n,m)}:{ACC(n,m)+3}]"
        a(f"v_mfma_f32_16x16x32_bf16 {c}, {WDR(5*k+m)}, {HR(k,n)}, {'0' if k == 0 else c}")
    for k in range(12):
        if k in PC: poll_check(252, 8, ("pb", 2*layer + PC[k]))
        wait_tags({("h", k)} | {("D", 5*k + m) for m in range(5)})
        if k == 0: st(10)
        if k in (1, 2, 4, 5, 6, 8, 10): st({1: 1, 2: 2, 4: 3, 5: 4, 6: 5, 8: 6, 10: 7}[k], "g2")
        if k == 9: a("s_barrier")
        pend = list(plan.get(k, []))
        j = 0
        for n in ((1, 2, 3, 0) if k < 12 - DEF else (1, 2, 3)):
            for m in range(5):
                mf(k, n, m)
                j += 1
                if j % 2 == 1 and pend: vm(*pend.pop(0))
                elif fill and k in (0, 1, 2):
                    a(fill.pop(0))
                    if fill: a(fill.pop(0))
        assert not pend
        if k in PI:
            where(PI[k]); poll_issue(252, 8, ("pb", 2*layer + PI[k]))
    assert not fill
    wr = [f"ds_write_b128 v{9+n}, v[{ACC(n,m)}:{ACC(n,m)+3}] offset:{m*1024}" for n in (1, 2, 3) for m in range(5)]
    for k in range(12 - DEF, 12):
        for m in range(5):
            mf(k, 0, m)
            if wr: a(wr.pop(0))
    for w_ in wr: a(w_)
    st(11)
    wait_tags({("x1", 0)})
    XR = lambda m, d: X + (m >> 1)*4 + (m & 1)*2 + d if m < 4 else X + 8 + d
    a("s_waitcnt lgkmcnt(0)\ns_barrier")
    for n in range(1, 4):
        for m in range(5):
            a(f"ds_read_b128 v[{ACC(n,m)}:{ACC(n,m)+3}], v{12+n} offset:{m*1024}")
    for m in range(5):
        for d in range(2):
            a(f"v_lshlrev_b32 v250, 16, v{XR(m,d)}\nv_and_b32 v251, 0xffff0000, v{XR(m,d)}")
            a(f"v_add_f32 v{ACC(0,m)+2*d}, v{ACC(0,m)+2*d}, v250\nv_add_f32 v{ACC(0,m)+2*d+1}, v{ACC(0,m)+2*d+1}, v251")
    for n in range(1, 4):
        a(f"s_waitcnt lgkmcnt({5*(3-n)})")
        for m in range(5):
            for i in range(4):
                a(f"v_add_f32 v{ACC(0,m)+i}, v{ACC(0,m)+i}, v{ACC(n,m)+i}")
    for m in range(5):
        for d in range(2):
            a(f"v_cvt_pk_bf16_f32 v{XR(m,d)}, v{ACC(0,m)+2*d}, v{ACC(0,m)+2*d+1}")
    if layer == 1:
        a(f"buffer_store_dwordx4 v[{X}:{X+3}], v6, s[12:15], s44 offen")
        a(f"buffer_store_dwordx4 v[{X+4}:{X+7}], v6, s[12:15], s44 offen offset:64")
        a(f"buffer_store_dwordx2 v[{X+8}:{X+9}], v7, s[12:15], s44 offen offset:128")
    else:
        vm(f"buffer_store_dwordx4 v[{X}:{X+3}], v3, s[8:11], s44 offen {SC}", ("s", 2))
        vm(f"buffer_store_dwordx4 v[{X+4}:{X+7}], v3, s[8:11], s44 offen offset:1024 {SC}", ("s", 2))
        vm(f"buffer_store_dwordx2 v[{X+8}:{X+9}], v5, s[8:11], s44 offen offset:2048 {SC}", ("s", 2))

NVAR = int(OPT.get("nvar", 2))
VBIT = int(OPT.get("vbit", 0))
def variants(lab, body):
    if NVAR == 1: body(0); return
    base = list(issued)
    a(f"s_bitcmp1_b32 s32, {VBIT}\ns_cbranch_scc1 {lab}_v1")
    body(0); a(f"s_branch {lab}_vj")
    issued[:] = base
    a(f"{lab}_v1:")
    body(1)
    a(f"{lab}_vj:")

def clear_tags():
    for j, t in enumerate(issued): issued[j] = ("old", 0)

def gen_B():
    name = "fb_kernel"
    global PROFILE
    prof = PROFILE
    PL = int(OPT.get("proflayer", 1))
    begin(name, 256)
    a("s_load_dwordx2 s[4:5], s[0:1], 88")
    a("s_load_dwordx2 s[6:7], s[0:1], 0")
    a("s_load_dwordx2 s[98:99], s[0:1], 72")
    decode_rb(); decode_theta(); lane_ids(); stream_bases()
    MINE = "s_lshl_b32 s56, s20, 4\ns_add_u32 s56, s56, s21"
    MINE2 = "s_lshl_b32 s56, s22, 3\ns_add_u32 s56, s56, s24"
    NPRE, ND, NA = int(OPT.get("wpre", 12)), int(OPT.get("wdrain", 10)), int(OPT.get("wafter", 20))
    pf = []
    def take(n, stop=None):
        for _ in range(n):
            if not pf or pf[0][1] == stop: break
            vm(*pf.pop(0))
    for layer in range(2):
        PROFILE = prof and layer == PL
        lname = f"{name}{layer}"
        if layer == 0:
            pf = [op for c in range(6) for op in wops(c)] + wdops(0, 25) + wdops(50, 60)
            s2_setup(0); a("v_lshlrev_b32 v99, 2, v0"); s2_fgen(0)
            a("s_waitcnt lgkmcnt(0)")
            srd(8, "s4", "s5", WS_BYTES); srd(12, "s6", "s7", XBYTES)
            s2_loads(0); s2_fgen(1); s2_setup2(0)
            take(NPRE, ("W", 5))
            for op in cs_loads(): vm(*op)
        else:
            s2_loads(1)
            take(int(OPT.get("wpre1", 8)), ("W", 5))
        st(1)
        s2_compute(lname, layer)
        st(2)
        take(ND)
        if layer == 0: cs_final(lname)
        wait_tags({("s", 10 + layer)})
        st(3)
        signal(3*layer, "s_lshr_b32 s56, s38, 1\ns_lshr_b32 s57, s32, 1\ns_lshl_b32 s58, s33, 1\ns_add_u32 s57, s57, s58", 252)
        take(NA)
        while any(op[1][0] == "W" for op in pf): take(1)
        P = list(glu1_phase(layer)) + [pf]
        glu2_early(layer)
        assert all(op[1][0] == "D" for op in pf)
        await_prep(3*layer, "s_lshl_b32 s57, s20, 2\ns_add_u32 s57, s57, s32\ns_mov_b32 s58, 0", 252)
        wait_tags({("W", 0)})
        a("s_barrier")
        await_(16, 252)
        st(4)
        for k in range(4): vm((f"s_add_u32 s39, s34, 0\n" if k == 0 else "") + f"buffer_load_dwordx4 a[{4*k}:{4*k+3}], v12, s[8:11], s39 offen offset:{512*k} {SC}", ("X", k))
        MH = "s_lshl_b32 s56, s20, 1\ns_lshr_b32 s57, s32, 1\ns_add_u32 s56, s56, s57\ns_and_b32 s57, s32, 1\ns_lshl_b32 s58, s21, 1\ns_add_u32 s57, s57, s58"
        def sigA():
            wait_tags({("hs", 0), ("hs", 1)}); signal(3*layer + 1, MH, 252)
        where = lambda st_: await_prep(3*layer + 1, f"s_add_u32 s57, s22, {32*st_}\ns_lshl_b32 s58, s32, 3", 252)
        def endhook():
            wait_tags({("hs", 2), ("hs", 3)}); signal(3*layer + 1, MH + "\ns_add_u32 s56, s56, 32", 252)
            where(0); poll_issue(252, 8, ("pa", layer))
        glu1_main(layer, P, {int(OPT.get("siga", 214)): sigA, "end": endhook})
        poll_check(252, 8, ("pa", layer))
        glu2_main(layer, lambda: signal(3*layer + 1, MH + "\ns_add_u32 s56, s56, 64", 254), where)
        if layer == 0:
            MB, GT = 4*SLOT, 4*SLOT + 25600
            st(12)
            k1_tables(MB, [])
            wait_tags({("s", 2)})
            signal(2, "s_lshl_b32 s56, s22, 2\ns_add_u32 s56, s56, s32\ns_mov_b32 s57, s24", 252)
            k1_f64()
            a("s_waitcnt lgkmcnt(0)\ns_barrier")
            k1_mbread(MB)
            clear_tags()
            pf = [op for c in range(4) for op in wops(c)] + wdops(0, 24) + wops(4) + wops(5) + wdops(24, 25) + wdops(50, 60)
            take(int(OPT.get("pf3", 10)), ("W", 4))
            a(f"s_lshl_b32 s33, s22, 2\ns_add_u32 s33, s33, s32\ns_mul_i32 s33, s33, 20480\ns_add_u32 s33, s33, {X2_OFF}")
            a("s_and_b32 s35, s24, 1\ns_mul_i32 s35, s35, 10240\ns_add_u32 s34, s33, 10240\ns_sub_u32 s34, s34, s35\ns_add_u32 s33, s33, s35")
            await_prep(2, "s_lshl_b32 s57, s22, 2\ns_add_u32 s57, s57, s32\ns_mov_b32 s58, 0", 252)
            await_(8, 252)
            st(13)
            q = []
            for k in range(20):
                kk = k % 10
                t = f"s_add_u32 s35, s{33 if k < 10 else 34}, {kk*1024}\n" if kk % 4 == 0 else ""
                q.append((t + f"buffer_load_dwordx4 v[{120+4*k}:{123+4*k}], v3, s[8:11], s35 offen offset:{1024*(kk % 4)} {SC}", ("x", k)))
            PROFILE = False
            k1_main(1, GT, 0, q, MB if int(OPT.get("zlin", 1)) else None)
            take(int(OPT.get("pf4a", 8)), ("W", 4))
            s2_setup(1); s2_fgen(0)
            wait_tags({("s", 3)})
            PROFILE = prof and PL == 1
            st(12)
            signal(6, "s_lshl_b32 s56, s24, 2\ns_add_u32 s56, s56, s32\ns_mov_b32 s57, s22", 252)
            take(int(OPT.get("pf4b", 20)), ("W", 4))
            s2_fgen(1); s2_setup2(1)
            a(f"""s_cmp_lt_u32 s32, 2
            s_cselect_b32 s57, 512, 0
            s_cmp_eq_u32 s33, 0
            s_cselect_b32 s57, 0, s57
            v_lshrrev_b32 v252, 5, v2
            v_mul_lo_u32 v252, v252, s57
            v_and_b32 v253, 31, v2
            v_lshlrev_b32 v253, 2, v253
            v_sub_u32 v253, v253, v252
            v_add_u32 v253, 512, v253
            s_lshl_b32 s57, s33, 9
            s_lshr_b32 s58, s37, 4
            s_lshl_b32 s58, s58, 7
            s_add_u32 s57, s57, s58
            s_add_u32 s59, s57, {FL_OFF + 6*32768 - 512}""")
            a("s_barrier")
            await_(64, 252)
            st(13)
    PROFILE = prof
    end(name, 256, agpr=256, vt=112)
    return name, LDS_B

n, l = gen_A(); a.launch(n, 256, 256, l)
n, l = gen_B(); a.launch(n, 256, 256, l)
a.L, nadd = hazard.pad(a.L)
print("hazard pads inserted:", nadd, file=sys.stderr)
hdr = "".join(l for l in open("interleave_layers__spectral_fnet__glu_gated_glu__prompt.s.ref").readlines()[:13])
out = [x for x in sys.argv[1:] if not x.startswith("--")][0]
open(out, "w").write(a.text(hdr))
```

```python
import sys, struct
from gen_common import *
import hazard

PROFILE = "--prof" in sys.argv
OPT = dict(x[2:].split("=") for x in sys.argv if x.startswith("--") and "=" in x)
def f32(x): return "0x%08x" % struct.unpack("<I", struct.pack("<f", x))[0]
SC = OPT.get("sc", "sc1").replace("+", " ")

MBY = 1 << 20
ASC = OPT.get("asc", "").replace("+", " ")
def Z_OFF(l):  return 1*MBY + l*3*MBY
def X1_OFF(l): return 7*MBY + l*3*MBY
def ST_OFF(l): return 13*MBY + l*(MBY//2)
def H_OFF(l):  return 14*MBY + l*6*MBY
X2_OFF  = 26*MBY
WP_OFF  = 29*MBY
WDP_OFF = 33*MBY
CS_OFF  = 35*MBY
FL_OFF  = 35*MBY + MBY//2
WS_BYTES = 0x1000_0000
XBYTES = 2048 * 640 * 2
WBYTES = 640 * 1536 * 2
KA = 24
def wp_pos(k, m): return 6*k + m if k < KA else 6*KA + (40-KA)*m + (k - KA)
SLOT = 24576; NS = 6
CSL = SLOT * NS
LDS_B = CSL + 3072

a = Asm()
issued = []
def vm(text, tag):
    a(text); issued.append(tag)
def wait_tags(tags):
    for t in tags: assert t in issued, t
    idx = max(j for j, t in enumerate(issued) if t in tags)
    n = len(issued) - 1 - idx
    a(f"s_waitcnt vmcnt({min(n, 63)})")
def st(i, mode=""):
    if OPT.get("pmode", "") and i < 8 and mode != OPT["pmode"]: return
    if mode and mode != OPT.get("pmode", ""): return
    if PROFILE:
        if "cyc" in OPT: a(f"s_memtime s[{64+2*i}:{65+2*i}]")
        else: stamp(a, i)
def srd(n, lo, hi, size):
    a(f"s_mov_b32 s{n}, {lo}\ns_mov_b32 s{n+1}, {hi}\ns_mov_b32 s{n+2}, {size}\ns_mov_b32 s{n+3}, 0x20000")
def begin(name, nwg):
    issued.clear()
    a.kernel_begin(name)
    if PROFILE: stamp_begin(a)
    a(f"s_cmp_ge_u32 s2, {nwg}")
    a(f"s_cbranch_scc1 {name}_end")
def end(name, vgpr, agpr=0, vt=0):
    a(f"{name}_fin:")
    if PROFILE: stamp_end(a, vt)
    a(f"{name}_end:")
    a.kernel_end(name, vgpr, agpr=agpr)
def lane_ids():
    a("""v_lshrrev_b32 v1, 6, v0
    v_and_b32 v2, 63, v0
    v_readfirstlane_b32 s32, v1
    v_lshlrev_b32 v3, 4, v2
    v_lshrrev_b32 v4, 4, v2
    v_and_b32 v8, 15, v2""")
def bf16_round(dst, src):
    a(f"v_cvt_pk_bf16_f32 v{dst}, v{src}, v{src}")
    a(f"v_lshlrev_b32 v{dst}, 16, v{dst}")
def ln_scalars(regs):
    for S, Q in regs: a(f"v_mul_f32 v{S}, {f32(1.0/640)}, v{S}\nv_mul_f32 v{Q}, {f32(1.0/640)}, v{Q}")
    for S, Q in regs: a(f"v_fma_f32 v{Q}, -v{S}, v{S}, v{Q}")
    for S, Q in regs: a(f"v_max_f32 v{Q}, 0, v{Q}")
    for S, Q in regs: bf16_round(Q, Q)
    for S, Q in regs: a(f"v_add_f32 v{Q}, {f32(1e-5)}, v{Q}")
    for S, Q in regs: bf16_round(Q, Q)
    for S, Q in regs: a(f"v_sqrt_f32 v{Q}, v{Q}")
    for S, Q in regs: bf16_round(Q, Q)
def reduce_lanes(vs, t, steps=(16, 32)):
    for w in steps:
        for j, v in enumerate(vs): a(f"v_mov_b32 v{t+j}, v{v}")
        for j, v in enumerate(vs): a(f"v_permlane{w}_swap_b32 v{v}, v{t+j}")
        for j, v in enumerate(vs): a(f"v_add_f32 v{v}, v{v}, v{t+j}")
def capture(fn):
    g = globals(); old = g["a"]; sub = Asm(); g["a"] = sub
    fn(); g["a"] = old
    return [l.strip() for l in sub.L]
def decode_theta():
    a("""s_and_b32 s28, s2, 7
    s_lshr_b32 s24, s2, 3
    s_lshr_b32 s22, s24, 3
    s_lshl_b32 s22, s22, 3
    s_add_u32 s22, s22, s28
    s_and_b32 s24, s24, 7
    s_lshr_b32 s28, s22, 1
    s_sub_u32 s23, 32, s28
    s_cmp_eq_u32 s28, 0
    s_cselect_b32 s23, 16, s23
    s_bitcmp1_b32 s22, 0
    s_cselect_b32 s23, s23, s28""")
def decode_rb():
    a("""s_and_b32 s28, s2, 7
    s_lshr_b32 s29, s2, 3
    s_lshr_b32 s20, s28, 2
    s_lshl_b32 s20, s20, 3
    s_and_b32 s33, s29, 7
    s_add_u32 s20, s20, s33
    s_and_b32 s21, s28, 3
    s_lshl_b32 s21, s21, 2
    s_lshr_b32 s33, s29, 3
    s_add_u32 s21, s21, s33""")

def signal(sid, mine, flagv):
    a(mine)
    a(f"s_lshl_b32 s56, s56, 7\ns_lshl_b32 s57, s57, 2\ns_add_u32 s56, s56, s57\ns_add_u32 s56, s56, {FL_OFF + sid*32768}")
    a(f"v_mov_b32 v{flagv}, 1\nv_mov_b32 v{flagv+1}, 0\ns_mov_b64 exec, 1")
    vm(f"buffer_store_dword v{flagv}, v{flagv+1}, s[8:11], s56 offen {SC}", ("f", sid))
    a("s_mov_b64 exec, -1")
def await_prep(sid, where, flagv):
    a(where)
    a(f"s_lshl_b32 s57, s57, 7\ns_lshl_b32 s58, s58, 2\ns_add_u32 s57, s57, s58\ns_add_u32 s59, s57, {FL_OFF + sid*32768}")
    a(f"v_lshlrev_b32 v{flagv+1}, 2, v2")
def await_(nfl, flagv):
    lab = a.label("sync")
    if nfl < 64: a(f"s_mov_b64 exec, {hex((1 << nfl) - 1)}")
    a("s_mov_b32 s58, 0x40000")
    a(f"{lab}_p:")
    a(f"buffer_load_dword v{flagv}, v{flagv+1}, s[8:11], s59 offen {SC}")
    a("s_sub_u32 s58, s58, 1\ns_waitcnt vmcnt(0)")
    a(f"v_cmp_ne_u32 vcc, 1, v{flagv}")
    a(f"s_cbranch_scc1 {lab}_x")
    a(f"s_cbranch_vccnz {lab}_p")
    a(f"{lab}_x:")
    a("s_mov_b64 exec, -1")

def k1_tables(MB, vmq, split=None):
    a("""v_lshrrev_b32 v23, 2, v8
    v_bfe_u32 v24, v8, 1, 1
    v_and_b32 v25, 1, v8""")
    a("s_mul_i32 s43, s24, 40\ns_add_u32 s43, s43, 1")
    a("v_lshlrev_b32 v26, 3, v23\nv_add3_u32 v26, v26, v24, s43")
    a("v_lshlrev_b32 v27, 1, v23\nv_add3_u32 v27, v27, v24, s43\nv_add_u32 v27, 32, v27")
    a("v_cvt_f32_u32 v26, v26\nv_cvt_f32_u32 v27, v27")
    for t in range(4):
        a(f"v_add_f32 v28, {f32(2.0*t)}, v26")
        a(f"v_mul_f32 v{12+t}, {f32(1.0/640)}, v28")
    a(f"v_mul_f32 v16, {f32(1.0/640)}, v27")
    a(f"v_cvt_f32_u32 v17, v25\nv_mul_f32 v17, {f32(0.25)}, v17")
    a("v_lshlrev_b32 v28, 3, v4\nv_lshl_add_u32 v28, v1, 1, v28\nv_cvt_f32_u32 v28, v28")
    for k in range(5): a(f"v_add_f32 v{18+k}, {f32(32.0*k)}, v28")
    a(f"""v_lshlrev_b32 v26, 31, v24
    v_xor_b32 v232, {f32(-1.0)}, v26
    v_or_b32 v26, v24, v25
    v_lshlrev_b32 v26, 31, v26
    v_xor_b32 v233, 1.0, v26
    v_xor_b32 v234, {f32(-1.0)}, v26
    v_lshlrev_b32 v26, 31, v23
    v_xor_b32 v235, v233, v26
    v_lshl_add_u32 v27, v1, 2, v3
    v_add_u32 v27, {MB}, v27""")
    for t in range(5):
        for k in range(5):
            r = 28 + ((t*5+k) % 4) * 3
            if split and t*5+k == split[0]: split[1]()
            a(f"v_fma_f32 v{r}, v{12+t}, v{18+k}, v17")
            a(f"v_add_f32 v{r+1}, v{r}, v{12+t}")
            a(f"v_cos_f32 v{r}, v{r}")
            a(f"v_cos_f32 v{r+1}, v{r+1}")
            if vmq: vm(*vmq.pop(0))
            a(f"v_cvt_pk_bf16_f32 v{r+2}, v{r}, v{r+1}")
            a(f"ds_write_b32 v27, v{r+2} offset:{(t*5+k)*1024}")
    assert not vmq
def k1_f64():
    a(f"v_lshl_add_u32 v28, v1, 4, v8\nv_cvt_f32_u32 v28, v28\nv_mul_f32 v28, {f32(1.0/64)}, v28")
    a("v_lshlrev_b32 v29, 4, v4\nv_cvt_f32_u32 v29, v29\nv_mul_f32 v29, v29, v28\nv_add_f32 v36, v28, v28")
    for p in range(2):
        for jj in range(4):
            a(f"s_mov_b32 s44, {f32(float(p + 4*jj))}")
            a(f"v_fma_f32 v30, v28, s44, v29")
            a(f"v_add_f32 v31, v30, v36")
            a(f"v_cos_f32 v32, v30\nv_cos_f32 v33, v31\nv_sin_f32 v34, v30\nv_sin_f32 v35, v31")
            a(f"v_cvt_pk_bf16_f32 v{200+4*p+jj}, v32, v33")
            a(f"v_cvt_pk_bf16_f32 v{208+4*p+jj}, -v34, -v35")
    for j in range(4): a(f"v_mov_b32 v{108+j}, 0x3f803f80")
    a("v_mul_u32_u24 v10, 80, v4")
def k1_mbread(MB):
    a(f"v_add_u32 v27, {MB}, v3")
    for f in range(25): a(f"ds_read_b128 a[{4*f}:{4*f+3}], v27 offset:{f*1024}")
def k1_main(layer, GT, sb, xq=None, ZSCR=None):
    XF = lambda k: 120 + 4*k if layer else 216 + (k % 4) * 4
    ACC = lambda q, t: 20 + (q*5+t)*4
    def xread(k):
        wait_tags({("x", k | 1 if layer == 0 else k)})
        if layer == 0: a(f"ds_read_b128 v[{XF(k)}:{XF(k)+3}], v{5 if k & 1 else 9} offset:{2048*(k >> 1)}")
    xq = xq or []
    for _ in range(int(OPT.get("k1pre", 8)) if layer else 0):
        if xq: vm(*xq.pop(0))
    a("s_waitcnt lgkmcnt(0)")
    if layer == 0:
        xread(0); st(sb); xread(1)
    for k in range(20):
        q, kk = divmod(k, 5)
        if layer == 0:
            if k + 2 < 20: xread(k + 2); a("s_waitcnt lgkmcnt(2)")
            else: a(f"s_waitcnt lgkmcnt({19 - k})")
        else:
            xread(k)
            if k == 0: st(sb)
        x = f"v[{XF(k)}:{XF(k)+3}]"
        for t in range(5):
            c = f"v[{ACC(q,t)}:{ACC(q,t)+3}]"
            a(f"v_mfma_f32_16x16x32_bf16 {c}, {x}, a[{4*(t*5+kk)}:{4*(t*5+kk)+3}], {'0' if kk == 0 else c}")
            if t in (0, 3) and xq: vm(*xq.pop(0))
        a(f"v_mfma_f32_16x16x32_bf16 v[100:103], {x}, v[108:111], {'0' if k == 0 else 'v[100:103]'}")
        a(f"v_mfma_f32_16x16x32_bf16 v[104:107], {x}, {x}, {'0' if k == 0 else 'v[104:107]'}")
    st(sb + 1)
    for t in range(5):
        for i in range(4):
            a(f"v_fmac_f32 v{ACC(0,t)+i}, v232, v{ACC(2,t)+i}")
            a(f"v_fmac_f32 v{ACC(1,t)+i}, v232, v{ACC(3,t)+i}")
        if t == 1:
            for i in range(4): a(f"ds_bpermute_b32 v{112+i}, v10, v{104+i} offset:{4*i}")
    a("s_waitcnt lgkmcnt(0)")
    ln_scalars([(100+i, 112+i) for i in range(4)])
    for i in range(4): a(f"v_rcp_f32 v{112+i}, v{112+i}")
    a("s_bitcmp1_b32 s24, 0\ns_cselect_b32 s44, 0x80000000, 0\nv_and_b32 v116, s44, v232")
    for i in range(4): a(f"v_xor_b32 v{112+i}, v116, v{112+i}")
    for t in range(5):
        sg = 235 if t == 4 else (233 if t % 2 == 0 else 234)
        for i in range(4):
            a(f"v_fmac_f32_dpp v{ACC(0,t)+i}, v{ACC(1,t)+i}, v{sg} quad_perm:[1,0,2,3] row_mask:0xf bank_mask:0xf")
    a(f"v_mul_u32_u24 v6, 144, v8\nv_lshlrev_b32 v7, 3, v4\nv_add3_u32 v6, v6, v7, {GT if GT <= 64 else 's45'}" if False else
      f"s_mov_b32 s45, {GT}\nv_mul_u32_u24 v6, 144, v8\nv_lshlrev_b32 v7, 3, v4\nv_add3_u32 v6, v6, v7, s45\ns_lshl_b32 s44, s32, 5\nv_add_u32 v9, s44, v6")
    for t in range(5):
        for i in range(4):
            a(f"v_mul_f32 v{ACC(0,t)+i}, v{ACC(0,t)+i}, v{112+i}")
        a(f"v_cvt_pk_bf16_f32 v{ACC(1,t)}, v{ACC(0,t)}, v{ACC(0,t)+1}")
        a(f"v_cvt_pk_bf16_f32 v{ACC(1,t)+1}, v{ACC(0,t)+2}, v{ACC(0,t)+3}")
        a(f"ds_write_b64 v9, v[{ACC(1,t)}:{ACC(1,t)+1}] offset:{t*16*144}")
    a(f"v_add_u32 v6, v6, v7")
    a("s_waitcnt lgkmcnt(0)\ns_barrier")
    st(sb + 2)
    for t in range(5):
        for p in range(2):
            r = 120 + (t*2+p)*4
            a(f"ds_read_b128 v[{r}:{r+3}], v6 offset:{t*16*144 + 64*p}")
    ZL = ZSCR is not None
    if ZL:
        a(f"s_mul_i32 s45, s32, 2560\ns_add_u32 s45, s45, {ZSCR}\nv_mul_u32_u24 v10, 160, v8\nv_add_u32 v10, s45, v10\nv_add_u32 v12, s45, v3")
    else:
        a(f"v_lshl_add_u32 v10, v1, 4, v8\nv_mul_u32_u24 v10, 160, v10")
    a("v_lshl_add_u32 v11, v4, 2, v10\nv_lshl_add_u32 v10, v4, 4, v10")
    a(f"s_mul_i32 s44, s23, 81920\ns_mul_i32 s45, s24, 10240\ns_add_u32 s44, s44, s45\ns_add_u32 s44, s44, {Z_OFF(layer)}")
    if ZL: a("s_mul_i32 s45, s32, 2560\ns_add_u32 s44, s44, s45")
    T1 = lambda t: 20 + t*8
    T2 = lambda t: 24 + t*8
    for t in range(5):
        a(f"s_waitcnt lgkmcnt({8 - 2*t})")
        for p in range(2):
            r = 120 + (t*2+p)*4
            a(f"v_mfma_f32_16x16x32_bf16 v[{T1(t)}:{T1(t)+3}], v[{r}:{r+3}], v[{200+4*p}:{203+4*p}], {'0' if p == 0 else f'v[{T1(t)}:{T1(t)+3}]'}")
            a(f"v_mfma_f32_16x16x32_bf16 v[{T2(t)}:{T2(t)+3}], v[{r}:{r+3}], v[{208+4*p}:{211+4*p}], {'0' if p == 0 else f'v[{T2(t)}:{T2(t)+3}]'}")
    for t in range(5):
        b = 76 + 4*(t & 1)
        a(f"v_sub_f32 v{b}, v{T1(t)}, v{T2(t)+1}")
        a(f"v_sub_f32 v{b+1}, v{T1(t)+2}, v{T2(t)+3}")
        a(f"v_add_f32 v{b+2}, v{T2(t)}, v{T1(t)+1}")
        a(f"v_add_f32 v{b+3}, v{T2(t)+2}, v{T1(t)+3}")
        a(f"v_cvt_pk_bf16_f32 v{60+t}, v{b}, v{b+1}")
        a(f"v_cvt_pk_bf16_f32 v{68+t}, v{b+2}, v{b+3}")
    zsc = SC if layer else OPT.get("asc", "").replace("+", " ")
    if ZL:
        a("ds_write_b128 v10, v[60:63]\nds_write_b128 v10, v[68:71] offset:80\nds_write_b32 v11, v64 offset:64\nds_write_b32 v11, v72 offset:144")
        a("s_waitcnt lgkmcnt(0)")
        for j in range(3): a(f"ds_read_b128 v[{84+4*j}:{87+4*j}], v12 offset:{1024*j}")
        for j in range(3):
            a(f"s_waitcnt lgkmcnt({2-j})")
            if j == 2: a("s_mov_b32 exec_hi, 0")
            vm(f"buffer_store_dwordx4 v[{84+4*j}:{87+4*j}], v3, s[8:11], s44 offen offset:{1024*j} {zsc}", ("s", 3))
        a("s_mov_b32 exec_hi, -1")
    else:
        vm(f"buffer_store_dwordx4 v[60:63], v10, s[8:11], s44 offen {zsc}", ("s", 3))
        vm(f"buffer_store_dwordx4 v[68:71], v10, s[8:11], s44 offen offset:80 {zsc}", ("s", 3))
        vm(f"buffer_store_dword v64, v11, s[8:11], s44 offen offset:64 {zsc}", ("s", 3))
        vm(f"buffer_store_dword v72, v11, s[8:11], s44 offen offset:144 {zsc}", ("s", 3))
    st(sb + 3)

def code_pf(lo, hi, vt, vd):
    if not int(OPT.get("cpf", 1)): return
    lab = a.label("pc")
    a(f"""s_getpc_b64 s[60:61]
    {lab}:
    s_add_u32 s60, s60, {lo} - {lab}
    s_addc_u32 s61, s61, {-1 if lo in PAST else 0}
    s_lshr_b32 s62, s2, 3
    s_lshl_b32 s62, s62, 2
    s_add_u32 s62, s62, s32
    s_lshl_b32 s62, s62, 10
    s_min_u32 s62, s62, {hi} - {lo} - 1024
    v_add_u32 v{vt}, s62, v3""")
    vm(f"global_load_dwordx4 v[{vd}:{vd+3}], v{vt}, s[60:61]", ("cp", 0))
PAST = {"fa_kernel", "fb_kernel"}

def gen_A():
    name = "fa_kernel"
    GT, MB, PP, XS = 0, 11520, 37120, 78080
    LDS = XS + 81920
    begin(name, 256)
    a("s_load_dwordx2 s[4:5], s[0:1], 88")
    a("s_load_dwordx2 s[6:7], s[0:1], 0")
    a("s_load_dwordx4 s[16:19], s[0:1], 48")
    a("s_load_dwordx2 s[26:27], s[0:1], 64")
    decode_theta(); lane_ids()
    a(f"""v_xor_b32 v5, v4, v2
    v_and_b32 v5, 7, v5
    v_lshlrev_b32 v5, 4, v5
    v_lshrrev_b32 v6, 3, v2
    v_mul_u32_u24 v9, 81920, v6
    v_add_u32 v9, v9, v5
    v_xor_b32 v5, 64, v9
    v_add_u32 v5, {8*81920}, v5
    s_lshr_b32 s33, s32, 1
    s_lshl_b32 s33, s33, 5
    s_add_u32 s33, s33, s23
    s_and_b32 s34, s32, 1
    s_lshl_b32 s34, s34, 10
    s_add_u32 s33, s33, s34
    s_mul_i32 s33, s33, 1280
    s_mul_i32 s35, s32, 20480
    s_add_u32 s35, s35, {XS}""")
    a(f"""s_and_b32 s38, s2, 7
    s_lshr_b32 s37, s2, 3
    v_lshrrev_b32 v10, 3, v2
    v_mul_u32_u24 v10, 3072, v10
    v_and_b32 v11, 7, v2
    v_lshl_add_u32 v11, v11, 4, v10
    s_mul_i32 s40, s38, {80*3072}
    s_and_b32 s41, s32, 1
    s_mul_i32 s41, s41, {40*3072}
    s_add_u32 s40, s40, s41
    s_lshl_b32 s41, s37, 7
    s_add_u32 s40, s40, s41
    s_mul_i32 s42, s32, 5120
    s_add_u32 s42, s42, {PP}""")
    def xissue():
        a("s_waitcnt lgkmcnt(0)")
        srd(8, "s4", "s5", WS_BYTES); srd(12, "s6", "s7", XBYTES)
        st(8)
        for k in range(10): vm(*xd[k])
        code_pf(name, "code_end", 42, 236)
        st(9)
    a("""s_and_b32 s34, s24, 1
    s_mul_i32 s34, s34, 640
    s_add_u32 s39, s33, 640
    s_sub_u32 s39, s39, s34
    s_add_u32 s33, s33, s34""")
    xd = [(f"s_add_u32 m0, s35, {1024*k - 128*((k % 10) >> 1)}\nbuffer_load_dwordx4 v{41 if k & 1 else 40}, s[12:15], s{33 if k < 10 else 39} offen offset:{128*((k % 10) >> 1)} lds", ("x", k)) for k in range(20)]
    a("v_mov_b32 v40, v9\nv_mov_b32 v41, v5")
    k1_tables(MB, [], (int(OPT.get("asplit", 10)), xissue))
    k1_f64()
    a("""v_lshrrev_b32 v29, 1, v8
    v_xor_b32 v29, v29, v4
    v_lshlrev_b32 v29, 4, v29
    v_lshl_add_u32 v9, v8, 7, v29
    v_xor_b32 v5, 64, v9
    v_add_u32 v9, s35, v9
    v_add_u32 v5, s35, v5""")
    st(1)
    a("s_waitcnt lgkmcnt(0)\ns_barrier")
    k1_mbread(MB)
    for k in range(10, 20): vm(*xd[k])
    st(10)
    base = list(issued)
    a("s_cmp_ge_u32 s2, 192")
    a(f"s_cbranch_scc1 {name}_wdld")
    for role in (0, 1):
        issued[:] = base; pq = []
        if role == 0:
            a("s_cmp_lt_u32 s32, 2\ns_cselect_b32 s48, s16, s18\ns_cselect_b32 s49, s17, s19")
            a(f"s_mov_b32 s50, {WBYTES}\ns_mov_b32 s51, 0x20000")
            for i in range(5):
                pq.append((f"s_add_u32 m0, s42, {1024*i}\nbuffer_load_dwordx4 v11, s[48:51], s40 offen lds" + (f"\ns_add_u32 s40, s40, {8*3072}" if i < 4 else ""), ("p", 0)))
        else:
            a(f"{name}_wdld:")
            a(f"""s_sub_u32 s36, s2, 192
            s_mul_i32 s36, s36, 3
            s_min_u32 s41, s32, 2
            s_add_u32 s36, s36, s41
            s_mul_i32 s40, s36, 10240
            s_mul_i32 s42, s32, 10240
            s_add_u32 s42, s42, {PP}""")
            srd(48, "s26", "s27", WBYTES)
            for i in range(10):
                t = "s_add_u32 s40, s40, 4096\n" if i in (4, 8) else ""
                if i % 4 == 0: t += f"s_add_u32 m0, s42, {(i // 4) * 4096}\n"
                pq.append((t + f"buffer_load_dwordx4 v3, s[48:51], s40 offen offset:{1024*(i % 4)} lds", ("p", 0)))
        if int(OPT.get("ppfirst", 0)):
            while pq: vm(*pq.pop(0))
        st(2)
        k1_main(0, GT, 3, pq, MB if int(OPT.get("zlin", 1)) else None)
        wait_tags({("p", 0)}); a("s_barrier")
        st(7)
        if role == 0: a(f"s_branch {name}_join")
    a(f"{name}_join:")
    a(f"""v_mov_b32 v12, 0
    v_lshrrev_b32 v13, 5, v0
    v_lshlrev_b32 v13, 15, v13
    v_and_b32 v14, 31, v0
    v_lshl_add_u32 v13, v14, 2, v13
    s_lshl_b32 s44, s2, 7
    s_add_u32 s44, s44, {FL_OFF}
    v_cmp_gt_u32 vcc, 0xe0, v0
    s_and_saveexec_b64 s[46:47], vcc
    s_cbranch_execz {name}_nofl
    buffer_store_dword v12, v13, s[8:11], s44 offen
    {name}_nofl:
    s_mov_b64 exec, s[46:47]""")
    a("""v_bfe_u32 v13, v2, 2, 2          ; r
    v_and_b32 v14, 3, v2              ; c
    s_cmp_ge_u32 s2, 192""")
    a(f"s_cbranch_scc1 {name}_wdpp")
    a(f"""v_lshrrev_b32 v15, 1, v4
    v_lshl_add_u32 v12, v15, 3, v13
    v_lshlrev_b32 v12, 7, v12
    v_lshrrev_b32 v15, 1, v14
    v_mul_u32_u24 v15, 10240, v15
    v_add_u32 v12, v12, v15
    v_and_b32 v15, 1, v14
    v_lshl_add_u32 v12, v15, 4, v12
    v_and_b32 v15, 1, v4
    v_lshl_add_u32 v12, v15, 3, v12
    s_lshl_b32 s45, s32, 5
    v_add_u32 v12, s45, v12""")
    for kk in range(5):
        for s in range(2):
            a(f"ds_read_b64_tr_b16 v[{120+4*kk+2*s}:{121+4*kk+2*s}], v12 offset:{PP + (16*kk + 4*s)*128}")
    a(f"""s_lshl_b32 s45, s37, 2
    s_add_u32 s45, s45, s32
    s_mul_i32 s47, s45, 43
    s_lshr_b32 s47, s47, 8            ; cb
    s_mul_i32 s48, s47, 6
    s_sub_u32 s48, s45, s48           ; mu
    s_mul_i32 s49, s47, 245760
    s_add_u32 s49, s49, {WP_OFF}
    s_mul_i32 s50, s48, {40-KA}
    s_add_u32 s50, s50, {5*KA}
    s_mul_i32 s51, s38, 5
    s_waitcnt lgkmcnt(0)""")
    for kk in range(5):
        a(f"""s_add_u32 s52, s51, {kk}
        s_mul_i32 s53, s52, 6
        s_add_u32 s53, s53, s48
        s_add_u32 s54, s52, s50
        s_cmp_lt_u32 s52, {KA}
        s_cselect_b32 s53, s53, s54
        s_lshl_b32 s53, s53, 10
        s_add_u32 s53, s53, s49""")
        a(f"buffer_store_dwordx4 v[{120+4*kk}:{123+4*kk}], v3, s[8:11], s53 offen {ASC}")
        a(f"v_mfma_f32_32x32x16_bf16 v[20:35], v[{120+4*kk}:{123+4*kk}], v[108:111], {'0' if kk == 0 else 'v[20:35]'}")
    a(f"""s_mul_i32 s52, s38, 96
    s_add_u32 s52, s52, s45
    s_lshl_b32 s52, s52, 7
    s_add_u32 s52, s52, {CS_OFF}
    v_lshrrev_b32 v12, 5, v2
    v_lshlrev_b32 v12, 4, v12
    s_mov_b32 s54, 1
    s_mov_b32 s55, 1
    s_mov_b64 exec, s[54:55]""")
    for j in range(4): a(f"buffer_store_dwordx4 v[{20+4*j}:{23+4*j}], v12, s[8:11], s52 offen offset:{32*j}")
    a("s_mov_b64 exec, -1")
    a(f"s_branch {name}_fin")
    a(f"{name}_wdpp:")
    a("s_cmp_eq_u32 s32, 3")
    a(f"s_cbranch_scc1 {name}_fin")
    a(f"""v_mul_u32_u24 v5, 1280, v13
    v_add_u32 v5, s42, v5
    s_lshr_b32 s44, s36, 2
    s_mul_i32 s44, s44, 5120
    s_and_b32 s45, s36, 3
    s_lshl_b32 s45, s45, 8
    s_add_u32 s44, s44, s45
    s_add_u32 s44, s44, {WDP_OFF}
    s_mov_b32 s45, {245760 - 5*1024}
    v_lshlrev_b32 v7, 4, v8""")
    for pi in range(10):
        a(f"""v_add_u32 v10, {4*pi}, v4
        v_mul_u32_u24 v11, 52, v10
        v_lshrrev_b32 v11, 8, v11
        v_mul_u32_u24 v12, 5, v11
        v_sub_u32 v12, v10, v12
        v_lshrrev_b32 v15, 1, v12
        v_lshlrev_b32 v15, 3, v15
        v_and_b32 v16, 1, v12
        v_add_u32 v15, v15, v16
        v_lshl_add_u32 v16, v14, 1, v15
        v_add_u32 v17, v14, v15
        v_cmp_gt_u32 vcc, 4, v12
        v_mul_u32_u24 v18, 20, v11
        v_mul_lo_u32 v11, v11, s45
        v_cndmask_b32 v16, v17, v16, vcc
        v_add_u32 v16, v16, v18
        v_lshl_add_u32 v16, v16, 3, v5
        v_lshl_add_u32 v11, v10, 10, v11
        v_add_u32 v{20+pi}, v11, v7""")
        for p in range(2):
            a(f"ds_read_b64_tr_b16 v[{120+pi*4+2*p}:{121+pi*4+2*p}], v16 offset:{p*5120}")
        if pi == 4: a("s_waitcnt lgkmcnt(0)")
    a("s_waitcnt lgkmcnt(0)")
    for pi in range(10):
        a(f"buffer_store_dwordx4 v[{120+pi*4}:{123+pi*4}], v{20+pi}, s[8:11], s44 offen {ASC}")
    end(name, 240, agpr=100, vt=112)
    return name, LDS

def wops(c):
    out = []
    for i in range(6):
        t = ""
        if i == 0: t += f"s_add_u32 s27, s25, {c*SLOT}\ns_add_u32 m0, s26, {(c % NS)*SLOT}\n"
        if i == 4: t += f"s_add_u32 s27, s27, 4096\ns_add_u32 m0, s26, {(c % NS)*SLOT + 4096}\n"
        t += f"buffer_load_dwordx4 v3, s[8:11], s27 offen offset:{1024*(i % 4)} lds"
        out.append((t, ("W", c)))
    return out
ROT = int(OPT.get("rotw", 1)); ROTD = int(OPT.get("rotd", 0))
def wops_rot(c):
    out = []
    for i in range(6):
        t = ""
        if i == 0:
            if c: t += f"s_add_u32 s59, s59, {SLOT}\ns_cmp_ge_u32 s59, {5*SLOT}\ns_cselect_b32 s59, 0, s59\n"
            t += f"s_add_u32 s27, s25, s59\ns_add_u32 s28, s26, s59\ns_mov_b32 m0, s28\n"
        if i == 4: t += f"s_add_u32 s27, s27, 4096\ns_add_u32 m0, s28, 4096\n"
        t += f"buffer_load_dwordx4 v3, s[8:11], s27 offen offset:{1024*(i % 4)} lds"
        out.append((t, ("W", c)))
    return out
def krot(j):
    if j >= 10: return f"s_and_b32 s18, s19, 1\ns_xor_b32 s18, s18, {j}\n"
    g = 5*(j // 5)
    return f"s_add_u32 s18, s19, {j}\ns_sub_u32 s17, s18, 5\ns_cmp_ge_u32 s18, {g+5}\ns_cselect_b32 s18, s17, s18\n"
def WDR(f):
    if f < 24: r = 160 + 4*f; return f"a[{r}:{r+3}]"
    if f == 24: return "v[192:195]"
    if f < 49: r = 4*(f - 25); return f"a[{r}:{r+3}]"
    r = 196 + 4*(f - 49); return f"v[{r}:{r+3}]"
ORD = [0, 3, 6, 9, 1, 4, 7, 10, 2, 5, 8, 11]
def wdops(f0, f1):
    out = []
    for f in range(f0, f1):
        k, m = divmod(f, 5)
        t = ""
        if m == 0 or (f == f0 and m < 4): t = f"s_add_u32 s30, s31, {ORD[k]*5120}\n"
        if m == 4: t = f"s_add_u32 s30, s31, {ORD[k]*5120 + 4096}\n"
        out.append((t + f"buffer_load_dwordx4 {WDR(f)}, v3, s[8:11], s30 offen offset:{1024*(m % 4)}", ("D", f)))
    return out

def stream_bases():
    a(f"""s_mul_i32 s25, s21, 245760
    s_mul_i32 s26, s32, 6144
    s_add_u32 s25, s25, s26
    s_add_u32 s25, s25, {WP_OFF}
    s_mul_i32 s31, s24, 245760
    s_mul_i32 s30, s32, 61440
    s_add_u32 s31, s31, s30
    s_add_u32 s31, s31, {WDP_OFF}
    s_mul_i32 s29, s21, 768
    s_add_u32 s29, s29, {CS_OFF}
    s_mov_b32 s19, 0""")

def s2_setup(layer):
    ZS = 5*SLOT
    a("""s_and_b32 s33, s21, 7
    s_lshr_b32 s34, s21, 3
    s_and_b32 s35, s32, 1
    s_xor_b32 s34, s34, s35
    s_sub_u32 s36, 32, s20
    s_cmp_eq_u32 s20, 0
    s_cselect_b32 s36, 16, s36
    s_cmp_eq_u32 s34, 0
    s_cselect_b32 s36, s20, s36
    s_lshl_b32 s37, s35, 5
    s_add_u32 s36, s36, s37           ; k
    s_sub_u32 s37, 64, s36
    s_and_b32 s37, s37, 63
    s_cmp_lt_u32 s32, 2
    s_cselect_b32 s37, s36, s37       ; ksrc
    s_cselect_b32 s39, -2, 0
    s_lshl_b32 s38, s20, 1
    s_add_u32 s38, s38, s34
    s_lshl_b32 s38, s38, 1
    s_add_u32 s38, s38, s35
    s_lshl_b32 s38, s38, 1""")
    for i in range(5):
        a(f"""v_add_u32 v20, {64*i}, v2
        v_mul_u32_u24 v21, 13108, v20
        v_lshrrev_b32 v21, 17, v21
        v_mul_u32_u24 v22, {81920 - 160}, v21
        v_lshl_add_u32 v{10+i}, v20, 4, v22""")
    a(f"""v_lshrrev_b32 v20, 1, v2
    v_mul_u32_u24 v20, 81920, v20
    v_and_b32 v21, 1, v2
    v_mul_u32_u24 v21, 80, v21
    v_add_u32 v47, v20, v21
    s_mul_i32 s40, s37, 160
    s_add_u32 s40, s40, s39
    s_mul_i32 s41, s33, 10240
    s_add_u32 s40, s40, s41
    s_add_u32 s40, s40, {Z_OFF(layer)}
    s_sub_u32 s41, s40, {10240 - 80}
    s_mul_i32 s42, s32, 6144
    s_add_u32 s42, s42, {ZS}
    s_mul_i32 s43, s33, 5
    s_sub_u32 s44, 75, s43
    s_cmp_lt_u32 s32, 2
    s_cselect_b32 s43, s43, s44
    v_lshlrev_b32 v5, 4, v8
    v_lshl_add_u32 v5, v4, 3, v5
    s_mul_i32 s44, s38, 20480
    s_lshl_b32 s45, s43, 8
    s_add_u32 s44, s44, s45""")
    if layer == 0:
        a("""v_mul_u32_u24 v6, 81920, v8
        v_lshl_add_u32 v7, v4, 3, v6
        v_lshl_add_u32 v6, v4, 4, v6
        s_mul_i32 s46, s36, 1280
        s_lshl_b32 s45, s43, 4
        s_add_u32 s46, s46, s45
        s_add_u32 s47, s46, 1310720""")
    else:
        a(f"s_add_u32 s46, s44, {X2_OFF}\ns_add_u32 s47, s46, 20480")
    a(f"""v_lshlrev_b32 v36, 6, v8
    v_add_u32 v36, s36, v36
    v_cvt_f32_u32 v36, v36
    v_mul_f32 v36, {f32(1.0/2048)}, v36
    v_lshlrev_b32 v38, 2, v4
    v_cvt_f32_u32 v38, v38
    s_cmp_lt_u32 s32, 2
    s_cselect_b32 s48, 0, 0x80000000""")
def s2_fgen(nt):
    if nt: a("v_add_f32 v36, 0.5, v36")
    a("v_mul_f32 v37, v38, v36")
    for p in range(2):
        for jj in range(4):
            r = 40 + (jj & 1)*3
            a(f"s_mov_b32 s49, {f32(float(16*p + jj))}")
            a(f"v_fma_f32 v{r}, v36, s49, v37")
            a(f"v_cos_f32 v{r+1}, v{r}\nv_sin_f32 v{r+2}, v{r}")
            a(f"v_xor_b32 v{r+2}, s48, v{r+2}")
            a(f"v_cvt_pk_bf16_f32 v{20+8*nt+4*p+jj}, v{r+1}, v{r+2}")
def s2_setup2(layer):
    a("""v_bfe_u32 v15, v2, 2, 2
    v_and_b32 v16, 3, v2
    v_lshl_add_u32 v17, v4, 3, v15
    v_mul_u32_u24 v17, 80, v17
    v_add_u32 v17, s42, v17
    v_and_b32 v18, 1, v16
    v_add_u32 v96, s42, v3
    v_mul_u32_u24 v97, 80, v2
    v_add_u32 v97, s42, v97""")
    a(f"""s_lshl_b32 s50, s38, 11
    s_lshl_b32 s51, s33, 8
    s_add_u32 s50, s50, s51
    s_lshr_b32 s51, s32, 1
    s_lshl_b32 s51, s51, 7
    s_add_u32 s50, s50, s51
    s_add_u32 s50, s50, {ST_OFF(layer)}
    s_add_u32 s44, s44, {X1_OFF(layer)}
    s_add_u32 s45, s44, 20480
    v_lshlrev_b32 v9, 3, v8
    v_lshl_add_u32 v9, v4, 11, v9
    v_mov_b32 v39, 0x3f803f80
    s_mov_b32 s52, -1
    s_mov_b32 s53, 0""")
S2XF = lambda nt: 100 + 6*nt
def s2_loads(layer):
    sc = SC if layer else ""
    for i in range(5): vm(f"buffer_load_dwordx4 v[{120+4*i}:{123+4*i}], v{10+i}, s[8:11], s40 offen {sc}", ("z", layer))
    vm(f"buffer_load_ushort v98, v47, s[8:11], s41 offen {sc}", ("z", layer))
    XF = S2XF
    for nt in range(2):
        if layer == 0:
            vm(f"buffer_load_dwordx4 v[{XF(nt)}:{XF(nt)+3}], v6, s[12:15], s{46+nt} offen", ("r", 0))
            vm(f"buffer_load_dwordx2 v[{XF(nt)+4}:{XF(nt)+5}], v7, s[12:15], s{46+nt} offen offset:64", ("r", 0))
        else:
            vm(f"buffer_load_dwordx4 v[{XF(nt)}:{XF(nt)+3}], v3, s[8:11], s{46+nt} offen {sc}", ("r", 1))
            vm(f"buffer_load_dwordx2 v[{XF(nt)+4}:{XF(nt)+5}], v5, s[8:11], s{46+nt} offen offset:1024 {sc}", ("r", 1))
def s2_compute(name, layer):
    XF = S2XF
    ACC = lambda nt, tl: 48 + (nt*3+tl)*4
    AF = lambda tl, p: 72 + (tl*2+p)*4
    wait_tags({("z", layer)})
    for i in range(5): a(f"ds_write_b128 v96, v[{120+4*i}:{123+4*i}] offset:{1024*i}")
    a("s_cmp_ge_u32 s32, 2")
    a(f"s_cbranch_scc1 {name}_right")
    base = list(issued)
    for right in (0, 1):
        issued[:] = base
        if right:
            a(f"{name}_right:")
            a("v_lshlrev_b32 v16, 4, v16\nv_sub_u32 v19, v17, v16\nv_add_u32 v19, 64, v19\nv_lshlrev_b32 v18, 3, v18\nv_sub_u32 v46, v17, v18\nv_add_u32 v46, 8, v46")
        else:
            a("ds_write_b16 v97, v98")
            a("v_lshl_add_u32 v19, v16, 4, v17\nv_lshl_add_u32 v46, v18, 3, v17\nv_add_u32 v46, 64, v46")
        for tl in range(3):
            for p in range(2):
                for s in range(2):
                    off = (32*p + 4*s)*80 + (0 if tl == 2 else ((8 - 8*tl) if right else 8*tl))
                    r = AF(tl, p) + 2*s
                    a(f"ds_read_b64_tr_b16 v[{r}:{r+1}], v{46 if tl == 2 else 19} offset:{off}")
        wait_tags({("r", layer)})
        for nt in range(2):
            for dw in range(6):
                tl, lo = dw >> 1, (dw & 1) * 2
                i0, i1 = (3 - lo, 2 - lo) if right else (lo, lo + 1)
                a(f"v_lshlrev_b32 v{ACC(nt,tl)+i0}, 16, v{XF(nt)+dw}")
                a(f"v_and_b32 v{ACC(nt,tl)+i1}, 0xffff0000, v{XF(nt)+dw}")
        if not right: a(f"v_mov_b32 v40, v{ACC(0,0)}\nv_mov_b32 v41, v{ACC(1,0)}")
        for tl in range(3):
            a(f"s_waitcnt lgkmcnt({8 - 4*tl})")
            for p in range(2):
                for nt in range(2):
                    c = f"v[{ACC(nt,tl)}:{ACC(nt,tl)+3}]"
                    a(f"v_mfma_f32_16x16x32_bf16 {c}, v[{AF(tl,p)}:{AF(tl,p)+3}], v[{20+8*nt+4*p}:{23+8*nt+4*p}], {c}")
        if not right:
            a("s_cmp_eq_u32 s33, 0\ns_cselect_b32 s54, 0xffff, 0\ns_mov_b32 s55, 0")
            a(f"v_cndmask_b32 v{ACC(0,0)}, v{ACC(0,0)}, v40, s[54:55]")
            a(f"v_cndmask_b32 v{ACC(1,0)}, v{ACC(1,0)}, v41, s[54:55]")
        for nt in range(2):
            for dw in range(6):
                tl, lo = dw >> 1, (dw & 1) * 2
                i0, i1 = (3 - lo, 2 - lo) if right else (lo, lo + 1)
                a(f"v_cvt_pk_bf16_f32 v{XF(nt)+dw}, v{ACC(nt,tl)+i0}, v{ACC(nt,tl)+i1}")
            vm(f"buffer_store_dwordx4 v[{XF(nt)}:{XF(nt)+3}], v3, s[8:11], s{44+nt} offen {SC}", ("s", 10 + layer))
        a("s_mov_b64 exec, s[52:53]")
        for nt in range(2):
            vm(f"buffer_store_dwordx2 v[{XF(nt)+4}:{XF(nt)+5}], v5, s[8:11], s{44+nt} offen offset:1024 {SC}", ("s", 10 + layer))
        a("s_mov_b64 exec, -1")
        for nt in range(2):
            for j in range(2):
                a(f"v_cndmask_b32 v{72+2*nt+j}, 0, v{XF(nt)+4+j}, s[52:53]")
        for nt in range(2):
            for dw in range(6):
                src = XF(nt)+dw if dw < 4 else 72+2*nt+dw-4
                c0 = "0" if dw == 0 else f"v{40+2*nt}"; c1 = "0" if dw == 0 else f"v{41+2*nt}"
                a(f"v_dot2_f32_bf16 v{40+2*nt}, v{src}, v39, {c0}")
                a(f"v_dot2_f32_bf16 v{41+2*nt}, v{src}, v{src}, {c1}")
        reduce_lanes([40, 41, 42, 43], 76)
        a("s_mov_b64 exec, 0xffff0000\nv_mov_b32 v40, v42\nv_mov_b32 v41, v43\ns_mov_b64 exec, s[52:53]")
        vm(f"buffer_store_dwordx2 v[40:41], v9, s[8:11], s50 offen {SC}", ("s", 10 + layer))
        a("s_mov_b64 exec, -1")
        if not right: a(f"s_branch {name}_s2done")
    a(f"{name}_s2done:")
def cs_loads():
    return [(f"buffer_load_dword v{112+p}, v99, s[8:11], s29 offen" + ("\ns_add_u32 s29, s29, 12288" if p < 7 else ""), ("c", 0)) for p in range(8)]
def cs_final(name):
    wait_tags({("c", 0)})
    a(f"""v_add_f32 v112, v112, v113
    v_add_f32 v114, v114, v115
    v_add_f32 v116, v116, v117
    v_add_f32 v118, v118, v119
    v_add_f32 v112, v112, v114
    v_add_f32 v116, v116, v118
    v_add_f32 v112, v112, v116
    v_cvt_pk_bf16_f32 v113, v112, v112
    v_lshlrev_b32 v113, 16, v113
    v_sub_f32 v113, v112, v113
    v_cvt_pk_bf16_f32 v112, v112, v113
    v_mov_b32 v113, 0
    v_mov_b32 v114, 0
    v_mov_b32 v115, 0
    v_lshlrev_b32 v99, 2, v99
    v_add_u32 v99, {CSL}, v99
    s_cmp_eq_u32 s32, 3
    s_cbranch_scc1 {name}_nocs
    ds_write_b128 v99, v[112:115]
    {name}_nocs:
    s_waitcnt lgkmcnt(0)""")

def glu1_phase(layer):
    D = int(OPT.get("g1d", 8)); R = D + 2
    AFB = 112; OUT = AFB + 4*R; SV = OUT + 8
    assert SV + 16 <= 192
    a(f"""s_lshl_b32 s33, s20, 2
    s_add_u32 s33, s33, s32           ; T
    s_mul_i32 s34, s33, 40960
    s_add_u32 s34, s34, {X1_OFF(layer)}
    s_mul_i32 s40, s33, 98304
    s_mul_i32 s41, s21, 3072
    s_add_u32 s40, s40, s41
    s_add_u32 s40, s40, {H_OFF(layer)}
    s_lshl_b32 s43, s33, 12
    s_add_u32 s43, s43, {ST_OFF(layer)}
    v_and_b32 v9, 1, v4
    v_lshrrev_b32 v10, 1, v4
    v_lshlrev_b32 v11, 4, v8
    v_lshl_add_u32 v11, v10, 8, v11
    v_mul_u32_u24 v12, 20480, v9
    v_add_u32 v12, v12, v11           ; x voffset
    v_mul_u32_u24 v13, 49152, v9
    v_add_u32 v13, v13, v11           ; h voffset
    v_and_b32 v14, 31, v2
    v_lshlrev_b32 v15, 3, v8
    v_lshl_add_u32 v15, v9, 11, v15
    v_lshl_add_u32 v15, v10, 10, v15
    v_lshlrev_b32 v14, 4, v14
    v_add_u32 v14, {CSL}, v14
    v_add_u32 v5, {2*SLOT}, v3
    v_add_u32 v6, {4*SLOT}, v3
    s_mov_b32 s46, -1
    s_mov_b32 s47, 0""")
    return D, R, AFB, OUT, SV

def glu1_main(layer, P, hooks, shift=0):
    D, R, AFB, OUT, SV = P[:5]
    order = sorted([(wp_pos(k, m), k, m) for k in range(40) for m in range(6)])
    def xop(k):
        t = f"s_add_u32 s39, s34, {k*512}\n" if k % 8 == 0 else ""
        return (t + f"buffer_load_dwordx4 a[{4*k}:{4*k+3}], v12, s[8:11], s39 offen offset:{512*(k % 8)} {SC}", ("X", k))
    slots = {}
    def put(i, op): slots.setdefault(i + shift, []).append(op)
    early = [xop(k) for k in range(4, 8)] + [xop(k) for k in range(8, 40)] + [(f"buffer_load_dwordx2 v[{SV+2*j}:{SV+2*j+1}], v15, s[8:11], s43 offen offset:{128*j} {SC}", ("T", 0)) for j in range(8)]
    for j, op in enumerate(early): put(2*j - (j > 8)*0, op)
    left = list(P[5])
    mid = wops(6) + left[:len(left)//2] + wops(7) + left[len(left)//2:] + wops(8)
    for j, op in enumerate(mid): put(90 + int(j * 53 / len(mid)), op)
    late = wdops(25, 30) + wops(9) + wdops(30, 50)
    for j, op in enumerate(late): put(146 + int(j * float(OPT.get('latesp', 2.5))), op)
    ACC = lambda m: 16 + 16*m
    seq = []
    for i, (p, k, m) in enumerate(order):
        seq.append(("f", i, k, m))
        if k == 39: seq.append(("e", i, 40, m))
    N = len(seq)
    AF = lambda j: AFB + (j % R)*4
    LB = {0: 3, 1: 5, 2: 6}
    def aread(j):
        kind, i, k, m = seq[j]
        if kind == "f":
            c, o = divmod(i, 24); slot = c % NS
            a(f"ds_read_b128 v[{AF(j)}:{AF(j)+3}], v{LB[slot // 2]} offset:{(slot & 1)*SLOT + o*1024}")
        else:
            a(f"ds_read_b128 v[{AF(j)}:{AF(j)+3}], v14 offset:{m*512}")
    CT, SD, XB = SV, SV + 1, SV + 4
    def stats():
        for j in (0, 4, 8, 12): a(f"v_add_f32 v{SV+j}, v{SV+j}, v{SV+j+2}\nv_add_f32 v{SV+j+1}, v{SV+j+1}, v{SV+j+3}")
        for j in (0, 8): a(f"v_add_f32 v{SV+j}, v{SV+j}, v{SV+j+4}\nv_add_f32 v{SV+j+1}, v{SV+j+1}, v{SV+j+5}")
        a(f"v_add_f32 v{SV}, v{SV}, v{SV+8}\nv_add_f32 v{SV+1}, v{SV+1}, v{SV+9}")
        reduce_lanes([SV, SV+1], SV+2, steps=(32,))
        ln_scalars([(SV, SV+1)])
        a(f"v_cvt_pk_bf16_f32 v{SV+2}, -v{SV}, -v{SV}")
        a(f"v_rcp_f32 v{SV}, v{SV+1}")
        a(f"v_cndmask_b32 v{XB}, 0, v{SV+2}, s[46:47]\nv_mov_b32 v{XB+1}, 0\nv_mov_b32 v{XB+2}, 0\nv_mov_b32 v{XB+3}, 0")
        a(f"v_mul_f32 v{SV}, {f32(-1.4426950408889634)}, v{SV}")
    def epi(m):
        A = ACC(m); gi = [0,1,2,3,8,9,10,11]; ui = [4,5,6,7,12,13,14,15]; o = OUT + 4*(m & 1)
        ops = []
        for h in range(2):
            js = range(4*h, 4*h+4)
            for j in js: ops.append(f"v_mul_f32 v{A+gi[j]}, v{CT}, v{A+gi[j]}")
            for j in js: ops.append(f"v_exp_f32 v{A+gi[j]}, v{A+gi[j]}")
            for j in js: ops.append(f"v_fma_f32 v{A+gi[j]}, v{A+gi[j]}, v{SD}, v{SD}")
            for j in js: ops.append(f"v_rcp_f32 v{A+gi[j]}, v{A+gi[j]}")
            for j in js: ops.append(f"v_mul_f32 v{A+gi[j]}, v{A+gi[j]}, v{A+ui[j]}")
            for j in (2*h, 2*h+1): ops.append(f"v_cvt_pk_bf16_f32 v{o+j}, v{A+gi[2*j]}, v{A+gi[2*j+1]}")
        ops.append(f"buffer_store_dwordx4 v[{o}:{o+3}], v13, s[8:11], s40 offen offset:{m*512} {SC}")
        return ops
    for j in range(D): aread(j)
    pend = []; donex = set()
    for j, (kind, i, k, m) in enumerate(seq):
        if kind == "f" and i == 1: st(5)
        if kind == "f" and i == 72: st(6)
        if kind == "f" and i == 144: st(7)
        nxt = j + D
        if nxt < N and seq[nxt][0] == "f" and seq[nxt][1] % 24 == 0:
            wait_tags({("W", seq[nxt][1] // 24)}); a("s_barrier")
        if kind == "f" and k not in donex:
            wait_tags({("X", k)}); donex.add(k)
        if kind == "f" and i == 110:
            wait_tags({("T", 0)}); pend = capture(stats)
        a(f"s_waitcnt lgkmcnt({min(D - 1, N - 1 - j)})")
        cc = f"v[{ACC(m)}:{ACC(m)+15}]"
        b = f"a[{4*k}:{4*k+3}]" if kind == "f" else f"v[{XB}:{XB+3}]"
        a(f"v_mfma_f32_32x32x16_bf16 {cc}, v[{AF(j)}:{AF(j)+3}], {b}, {'0' if k == 0 else cc}")
        if nxt < N: aread(nxt)
        if kind == "f":
            for op in slots.pop(i, []):
                if op[1][0] in OPT.get("g1skip", ""): issued.insert(0, op[1])
                else: vm(*op)
            if k == KA + 1 and m > 0:
                assert not pend
                pend = epi(m - 1)
        for _ in range(3):
            if pend:
                op = pend.pop(0)
                if op.startswith("buffer"): vm(op, ("hs", m - 1))
                elif "V" not in OPT.get("g1skip", ""): a(op)
        if kind == "f" and i in hooks: hooks[i]()
    assert not pend and not slots, (pend, slots)
    st(8)
    hooks["end"]()
    for op in epi(5):
        if op.startswith("buffer"): vm(op, ("hs", 5))
        else: a(op)

def glu2_early(layer):
    for n in range(4):
        a(f"""s_add_u32 s56, s32, {n}
        s_and_b32 s56, s56, 3
        s_lshl_b32 s57, s22, 2
        s_add_u32 s57, s57, s56
        s_mul_i32 s57, s57, 49152
        s_mul_i32 s56, s32, 12288
        s_add_u32 s57, s57, s56
        s_add_u32 s{48+n}, s57, {H_OFF(layer)}""")
    a("""s_lshl_b32 s56, s22, 2
    s_add_u32 s56, s56, s32
    s_mul_i32 s56, s56, 20480
    s_mul_i32 s57, s24, 2560
    s_add_u32 s52, s56, s57""")
def glu2_late(layer):
    a(f"""s_add_u32 s45, s52, {X1_OFF(layer)}
    v_lshrrev_b32 v5, 1, v4
    v_lshlrev_b32 v5, 8, v5
    v_lshl_add_u32 v5, v8, 4, v5
    v_and_b32 v6, 1, v4
    v_lshl_add_u32 v5, v6, 3, v5""")
    for n in range(1, 4):
        a(f"""s_add_u32 s33, s32, {n}
        s_and_b32 s33, s33, 3
        s_lshl_b32 s34, s33, 2
        s_add_u32 s34, s34, s32
        s_mul_i32 s34, s34, 5120
        v_add_u32 v{9+n}, s34, v3
        s_lshl_b32 s34, s32, 2
        s_add_u32 s33, s33, s34
        s_mul_i32 s33, s33, 5120
        v_add_u32 v{12+n}, s33, v3""")
    if layer == 1:
        a("""s_lshr_b32 s33, s32, 1
        s_lshl_b32 s33, s33, 5
        s_add_u32 s33, s33, s23
        s_and_b32 s34, s32, 1
        s_lshl_b32 s34, s34, 10
        s_add_u32 s33, s33, s34
        s_mul_i32 s33, s33, 1280
        s_mul_i32 s34, s24, 160
        s_add_u32 s44, s33, s34
        v_mul_u32_u24 v6, 81920, v8
        v_lshl_add_u32 v7, v4, 3, v6
        v_lshl_add_u32 v6, v4, 4, v6""")
        srd(12, "s98", "s99", XBYTES)
    else:
        a(f"s_add_u32 s44, s52, {X2_OFF}")

def poll_issue(flagv, nfl, tag):
    a(f"s_mov_b64 exec, {hex((1 << nfl) - 1)}")
    vm(f"buffer_load_dword v{flagv}, v{flagv+1}, s[8:11], s59 offen {SC}", tag)
    a("s_mov_b64 exec, -1")
def poll_check(flagv, nfl, tag):
    lab = a.label("chk")
    wait_tags({tag})
    a(f"s_mov_b64 exec, {hex((1 << nfl) - 1)}\nv_cmp_ne_u32 vcc, 1, v{flagv}\ns_mov_b64 exec, -1\ns_cbranch_vccz {lab}")
    await_(nfl, flagv)
    a(f"{lab}:")

def glu2_main(layer, sigB, where):
    def HR(k, n):
        sl = k % 10
        r = 96 + sl*16 + 4*n if sl < 6 else 96 + (sl - 6)*16 + 4*n
        return f"{'v' if sl < 6 else 'a'}[{r}:{r+3}]"
    X = 240
    def ops(k):
        return [(f"s_add_u32 s17, s{48+n}, {ORD[k]*1024}\nbuffer_load_dwordx4 {HR(k,n)}, v3, s[8:11], s17 offen {SC}", ("h", k)) for n in range(4)]
    xops = [(f"buffer_load_dwordx4 v[{X}:{X+3}], v3, s[8:11], s45 offen {SC}", ("x1", 0)), (f"buffer_load_dwordx4 v[{X+4}:{X+7}], v3, s[8:11], s45 offen offset:1024 {SC}", ("x1", 0)),
            (f"buffer_load_dwordx2 v[{X+8}:{X+9}], v5, s[8:11], s45 offen offset:2048 {SC}", ("x1", 0))]
    for k in range(4):
        for o in ops(k): vm(*o)
        if k == int(OPT.get("pi1", 1)):
            where(1); poll_issue(252, 8, ("pb", 2*layer + 1))
    wait_tags({("hs", 5)})
    st(9)
    sigB()
    fill = capture(lambda: glu2_late(layer))
    PC2 = int(OPT.get("pc2", 4))
    plan = {0: ops(4) + ops(5), 1: ops(6) + ops(7), 7: xops}
    plan[PC2] = plan.get(PC2, []) + ops(8) + ops(9); plan[PC2 + 1] = plan.get(PC2 + 1, []) + ops(10) + ops(11)
    PI = {int(OPT.get("pi2", 1)): 2}
    PC = {0: 1, PC2: 2}
    ACC = lambda n, m: 16 + (n*5+m)*4
    DEF = int(OPT.get("g2def", 3))
    def mf(k, n, m):
        c = f"v[{ACC(n,m)}:{ACC(n,m)+3}]"
        a(f"v_mfma_f32_16x16x32_bf16 {c}, {WDR(5*k+m)}, {HR(k,n)}, {'0' if k == 0 else c}")
    for k in range(12):
        if k in PC: poll_check(252, 8, ("pb", 2*layer + PC[k]))
        wait_tags({("h", k)} | {("D", 5*k + m) for m in range(5)})
        if k == 0: st(10)
        if k in (1, 2, 4, 5, 6, 8, 10): st({1: 1, 2: 2, 4: 3, 5: 4, 6: 5, 8: 6, 10: 7}[k], "g2")
        if k == 9: a("s_barrier")
        pend = list(plan.get(k, []))
        j = 0
        for n in ((1, 2, 3, 0) if k < 12 - DEF else (1, 2, 3)):
            for m in range(5):
                mf(k, n, m)
                j += 1
                if j % 2 == 1 and pend: vm(*pend.pop(0))
                elif fill and k in (0, 1, 2):
                    a(fill.pop(0))
                    if fill: a(fill.pop(0))
        assert not pend
        if k in PI:
            where(PI[k]); poll_issue(252, 8, ("pb", 2*layer + PI[k]))
    assert not fill
    wr = [f"ds_write_b128 v{9+n}, v[{ACC(n,m)}:{ACC(n,m)+3}] offset:{m*1024}" for n in (1, 2, 3) for m in range(5)]
    for k in range(12 - DEF, 12):
        for m in range(5):
            mf(k, 0, m)
            if wr: a(wr.pop(0))
    for w_ in wr: a(w_)
    st(11)
    wait_tags({("x1", 0)})
    XR = lambda m, d: X + (m >> 1)*4 + (m & 1)*2 + d if m < 4 else X + 8 + d
    a("s_waitcnt lgkmcnt(0)\ns_barrier")
    for n in range(1, 4):
        for m in range(5):
            a(f"ds_read_b128 v[{ACC(n,m)}:{ACC(n,m)+3}], v{12+n} offset:{m*1024}")
    for m in range(5):
        for d in range(2):
            a(f"v_lshlrev_b32 v250, 16, v{XR(m,d)}\nv_and_b32 v251, 0xffff0000, v{XR(m,d)}")
            a(f"v_add_f32 v{ACC(0,m)+2*d}, v{ACC(0,m)+2*d}, v250\nv_add_f32 v{ACC(0,m)+2*d+1}, v{ACC(0,m)+2*d+1}, v251")
    for n in range(1, 4):
        a(f"s_waitcnt lgkmcnt({5*(3-n)})")
        for m in range(5):
            for i in range(4):
                a(f"v_add_f32 v{ACC(0,m)+i}, v{ACC(0,m)+i}, v{ACC(n,m)+i}")
    for m in range(5):
        for d in range(2):
            a(f"v_cvt_pk_bf16_f32 v{XR(m,d)}, v{ACC(0,m)+2*d}, v{ACC(0,m)+2*d+1}")
    if layer == 1:
        a(f"buffer_store_dwordx4 v[{X}:{X+3}], v6, s[12:15], s44 offen")
        a(f"buffer_store_dwordx4 v[{X+4}:{X+7}], v6, s[12:15], s44 offen offset:64")
        a(f"buffer_store_dwordx2 v[{X+8}:{X+9}], v7, s[12:15], s44 offen offset:128")
    else:
        vm(f"buffer_store_dwordx4 v[{X}:{X+3}], v3, s[8:11], s44 offen {SC}", ("s", 2))
        vm(f"buffer_store_dwordx4 v[{X+4}:{X+7}], v3, s[8:11], s44 offen offset:1024 {SC}", ("s", 2))
        vm(f"buffer_store_dwordx2 v[{X+8}:{X+9}], v5, s[8:11], s44 offen offset:2048 {SC}", ("s", 2))

NVAR = int(OPT.get("nvar", 2))
VBIT = int(OPT.get("vbit", 0))
def variants(lab, body):
    if NVAR == 1: body(0); return
    base = list(issued)
    a(f"s_bitcmp1_b32 s32, {VBIT}\ns_cbranch_scc1 {lab}_v1")
    body(0); a(f"s_branch {lab}_vj")
    issued[:] = base
    a(f"{lab}_v1:")
    body(1)
    a(f"{lab}_vj:")

def clear_tags():
    for j, t in enumerate(issued): issued[j] = ("old", 0)

def gen_B():
    name = "fb_kernel"
    global PROFILE
    prof = PROFILE
    PL = int(OPT.get("proflayer", 1))
    begin(name, 256)
    a("s_load_dwordx2 s[4:5], s[0:1], 88")
    a("s_load_dwordx2 s[6:7], s[0:1], 0")
    a("s_load_dwordx2 s[98:99], s[0:1], 72")
    decode_rb(); decode_theta(); lane_ids(); stream_bases()
    MINE = "s_lshl_b32 s56, s20, 4\ns_add_u32 s56, s56, s21"
    MINE2 = "s_lshl_b32 s56, s22, 3\ns_add_u32 s56, s56, s24"
    NPRE, ND, NA = int(OPT.get("wpre", 12)), int(OPT.get("wdrain", 10)), int(OPT.get("wafter", 20))
    pf = []
    def take(n, stop=None):
        for _ in range(n):
            if not pf or pf[0][1] == stop: break
            vm(*pf.pop(0))
    for layer in range(2):
        PROFILE = prof and layer == PL
        lname = f"{name}{layer}"
        if layer == 0:
            pf = [op for c in range(6) for op in wops(c)] + wdops(0, 25) + wdops(50, 60)
            s2_setup(0); a("v_lshlrev_b32 v99, 2, v0"); s2_fgen(0)
            a("s_waitcnt lgkmcnt(0)")
            srd(8, "s4", "s5", WS_BYTES); srd(12, "s6", "s7", XBYTES)
            s2_loads(0); s2_fgen(1); s2_setup2(0)
            if int(OPT.get("cpf2", 1)): code_pf("fb_kernel", "code_end", 250, 244)
            take(NPRE, ("W", 5))
            for op in cs_loads(): vm(*op)
        else:
            s2_loads(1)
            take(int(OPT.get("wpre1", 8)), ("W", 5))
        st(1)
        s2_compute(lname, layer)
        st(2)
        take(ND)
        if layer == 0: cs_final(lname)
        wait_tags({("s", 10 + layer)})
        st(3)
        signal(3*layer, "s_lshr_b32 s56, s38, 1\ns_lshr_b32 s57, s32, 1\ns_lshl_b32 s58, s33, 1\ns_add_u32 s57, s57, s58", 252)
        take(NA)
        while any(op[1][0] == "W" for op in pf): take(1)
        P = list(glu1_phase(layer)) + [pf]
        glu2_early(layer)
        assert all(op[1][0] == "D" for op in pf)
        await_prep(3*layer, "s_lshl_b32 s57, s20, 2\ns_add_u32 s57, s57, s32\ns_mov_b32 s58, 0", 252)
        wait_tags({("W", 0)})
        a("s_barrier")
        await_(16, 252)
        st(4)
        for k in range(4): vm((f"s_add_u32 s39, s34, 0\n" if k == 0 else "") + f"buffer_load_dwordx4 a[{4*k}:{4*k+3}], v12, s[8:11], s39 offen offset:{512*k} {SC}", ("X", k))
        MH = "s_lshl_b32 s56, s20, 1\ns_lshr_b32 s57, s32, 1\ns_add_u32 s56, s56, s57\ns_and_b32 s57, s32, 1\ns_lshl_b32 s58, s21, 1\ns_add_u32 s57, s57, s58"
        def sigA():
            wait_tags({("hs", 0), ("hs", 1)}); signal(3*layer + 1, MH, 252)
        where = lambda st_: await_prep(3*layer + 1, f"s_add_u32 s57, s22, {32*st_}\ns_lshl_b32 s58, s32, 3", 252)
        def endhook():
            wait_tags({("hs", 2), ("hs", 3)}); signal(3*layer + 1, MH + "\ns_add_u32 s56, s56, 32", 252)
            where(0); poll_issue(252, 8, ("pa", layer))
        glu1_main(layer, P, {int(OPT.get("siga", 214)): sigA, "end": endhook})
        poll_check(252, 8, ("pa", layer))
        glu2_main(layer, lambda: signal(3*layer + 1, MH + "\ns_add_u32 s56, s56, 64", 254), where)
        if layer == 0:
            MB, GT = 4*SLOT, 4*SLOT + 25600
            st(12)
            k1_tables(MB, [])
            wait_tags({("s", 2)})
            signal(2, "s_lshl_b32 s56, s22, 2\ns_add_u32 s56, s56, s32\ns_mov_b32 s57, s24", 252)
            k1_f64()
            a("s_waitcnt lgkmcnt(0)\ns_barrier")
            k1_mbread(MB)
            clear_tags()
            pf = [op for c in range(4) for op in wops(c)] + wdops(0, 24) + wops(4) + wops(5) + wdops(24, 25) + wdops(50, 60)
            if int(OPT.get("cpf3", 1)): code_pf("fb_l1", "code_end", 250, 244)
            take(int(OPT.get("pf3", 10)), ("W", 4))
            a(f"s_lshl_b32 s33, s22, 2\ns_add_u32 s33, s33, s32\ns_mul_i32 s33, s33, 20480\ns_add_u32 s33, s33, {X2_OFF}")
            a("s_and_b32 s35, s24, 1\ns_mul_i32 s35, s35, 10240\ns_add_u32 s34, s33, 10240\ns_sub_u32 s34, s34, s35\ns_add_u32 s33, s33, s35")
            await_prep(2, "s_lshl_b32 s57, s22, 2\ns_add_u32 s57, s57, s32\ns_mov_b32 s58, 0", 252)
            await_(8, 252)
            st(13)
            q = []
            for k in range(20):
                kk = k % 10
                t = f"s_add_u32 s35, s{33 if k < 10 else 34}, {kk*1024}\n" if kk % 4 == 0 else ""
                q.append((t + f"buffer_load_dwordx4 v[{120+4*k}:{123+4*k}], v3, s[8:11], s35 offen offset:{1024*(kk % 4)} {SC}", ("x", k)))
            PROFILE = False
            k1_main(1, GT, 0, q, MB if int(OPT.get("zlin", 1)) else None)
            a("fb_l1:")
            take(int(OPT.get("pf4a", 8)), ("W", 4))
            s2_setup(1); s2_fgen(0)
            wait_tags({("s", 3)})
            PROFILE = prof and PL == 1
            st(12)
            signal(6, "s_lshl_b32 s56, s24, 2\ns_add_u32 s56, s56, s32\ns_mov_b32 s57, s22", 252)
            take(int(OPT.get("pf4b", 20)), ("W", 4))
            s2_fgen(1); s2_setup2(1)
            a(f"""s_cmp_lt_u32 s32, 2
            s_cselect_b32 s57, 512, 0
            s_cmp_eq_u32 s33, 0
            s_cselect_b32 s57, 0, s57
            v_lshrrev_b32 v252, 5, v2
            v_mul_lo_u32 v252, v252, s57
            v_and_b32 v253, 31, v2
            v_lshlrev_b32 v253, 2, v253
            v_sub_u32 v253, v253, v252
            v_add_u32 v253, 512, v253
            s_lshl_b32 s57, s33, 9
            s_lshr_b32 s58, s37, 4
            s_lshl_b32 s58, s58, 7
            s_add_u32 s57, s57, s58
            s_add_u32 s59, s57, {FL_OFF + 6*32768 - 512}""")
            a("s_barrier")
            await_(64, 252)
            st(13)
    PROFILE = prof
    end(name, 256, agpr=256, vt=112)
    return name, LDS_B

n, l = gen_A(); a.launch(n, 256, 256, l)
n, l = gen_B(); a.launch(n, 256, 256, l)
a("code_end:")
a.L, nadd = hazard.pad(a.L)
print("hazard pads inserted:", nadd, file=sys.stderr)
hdr = "".join(l for l in open("interleave_layers__spectral_fnet__glu_gated_glu__prompt.s.ref").readlines()[:13])
out = [x for x in sys.argv[1:] if not x.startswith("--")][0]
open(out, "w").write(a.text(hdr))
```

```python
import sys, struct
from gen_common import *
import hazard

PROFILE = "--prof" in sys.argv
OPT = dict(x[2:].split("=") for x in sys.argv if x.startswith("--") and "=" in x)
def f32(x): return "0x%08x" % struct.unpack("<I", struct.pack("<f", x))[0]
SC = OPT.get("sc", "sc1").replace("+", " ")

MBY = 1 << 20
KN = "interleave_layers__spectral_fnet__glu_gated_glu__prompt_kernel"
ASC = SC
def Z_OFF(l):  return 1*MBY + l*3*MBY
def X1_OFF(l): return 7*MBY + l*3*MBY
def ST_OFF(l): return 13*MBY + l*(MBY//2)
def H_OFF(l):  return 14*MBY + l*6*MBY
X2_OFF  = 26*MBY
WP_OFF  = 29*MBY
WDP_OFF = 33*MBY
CS_OFF  = 35*MBY
FL_OFF  = 35*MBY + MBY//2
WS_BYTES = 0x1000_0000
XBYTES = 2048 * 640 * 2
WBYTES = 640 * 1536 * 2
KA = 24
def wp_pos(k, m): return 6*k + m if k < KA else 6*KA + (40-KA)*m + (k - KA)
SLOT = 24576; NS = 6
CSL = SLOT * NS
LDS_B = CSL + 3072

a = Asm()
issued = []
def vm(text, tag):
    a(text); issued.append(tag)
def wait_tags(tags):
    for t in tags: assert t in issued, t
    idx = max(j for j, t in enumerate(issued) if t in tags)
    n = len(issued) - 1 - idx
    a(f"s_waitcnt vmcnt({min(n, 63)})")
def st(i, mode=""):
    if OPT.get("pmode", "") and i < 8 and mode != OPT["pmode"]: return
    if mode and mode != OPT.get("pmode", ""): return
    if PROFILE:
        if "cyc" in OPT: a(f"s_memtime s[{64+2*i}:{65+2*i}]")
        else: stamp(a, i)
def srd(n, lo, hi, size):
    a(f"s_mov_b32 s{n}, {lo}\ns_mov_b32 s{n+1}, {hi}\ns_mov_b32 s{n+2}, {size}\ns_mov_b32 s{n+3}, 0x20000")
def begin(name, nwg):
    issued.clear()
    a.kernel_begin(name)
    if PROFILE: stamp_begin(a)
    a(f"s_cmp_ge_u32 s2, {nwg}")
    a(f"s_cbranch_scc1 {name}_end")
def end(name, vgpr, agpr=0, vt=0):
    a(f"{name}_fin:")
    if PROFILE: stamp_end(a, vt)
    a(f"{name}_end:")
    a.kernel_end(name, vgpr, agpr=agpr)
def lane_ids():
    a("""v_lshrrev_b32 v1, 6, v0
    v_and_b32 v2, 63, v0
    v_readfirstlane_b32 s32, v1
    v_lshlrev_b32 v3, 4, v2
    v_lshrrev_b32 v4, 4, v2
    v_and_b32 v8, 15, v2""")
def bf16_round(dst, src):
    a(f"v_cvt_pk_bf16_f32 v{dst}, v{src}, v{src}")
    a(f"v_lshlrev_b32 v{dst}, 16, v{dst}")
def ln_scalars(regs):
    for S, Q in regs: a(f"v_mul_f32 v{S}, {f32(1.0/640)}, v{S}\nv_mul_f32 v{Q}, {f32(1.0/640)}, v{Q}")
    for S, Q in regs: a(f"v_fma_f32 v{Q}, -v{S}, v{S}, v{Q}")
    for S, Q in regs: a(f"v_max_f32 v{Q}, 0, v{Q}")
    for S, Q in regs: bf16_round(Q, Q)
    for S, Q in regs: a(f"v_add_f32 v{Q}, {f32(1e-5)}, v{Q}")
    for S, Q in regs: bf16_round(Q, Q)
    for S, Q in regs: a(f"v_sqrt_f32 v{Q}, v{Q}")
    for S, Q in regs: bf16_round(Q, Q)
def reduce_lanes(vs, t, steps=(16, 32)):
    for w in steps:
        for j, v in enumerate(vs): a(f"v_mov_b32 v{t+j}, v{v}")
        for j, v in enumerate(vs): a(f"v_permlane{w}_swap_b32 v{v}, v{t+j}")
        for j, v in enumerate(vs): a(f"v_add_f32 v{v}, v{v}, v{t+j}")
def capture(fn):
    g = globals(); old = g["a"]; sub = Asm(); g["a"] = sub
    fn(); g["a"] = old
    return [l.strip() for l in sub.L]
def decode_theta():
    a("""s_and_b32 s28, s2, 7
    s_lshr_b32 s24, s2, 3
    s_lshr_b32 s22, s24, 3
    s_lshl_b32 s22, s22, 3
    s_add_u32 s22, s22, s28
    s_and_b32 s24, s24, 7
    s_lshr_b32 s28, s22, 1
    s_sub_u32 s23, 32, s28
    s_cmp_eq_u32 s28, 0
    s_cselect_b32 s23, 16, s23
    s_bitcmp1_b32 s22, 0
    s_cselect_b32 s23, s23, s28""")
def decode_rb():
    a("""s_and_b32 s28, s2, 7
    s_lshr_b32 s29, s2, 3
    s_lshr_b32 s20, s28, 2
    s_lshl_b32 s20, s20, 3
    s_and_b32 s33, s29, 7
    s_add_u32 s20, s20, s33
    s_and_b32 s21, s28, 3
    s_lshl_b32 s21, s21, 2
    s_lshr_b32 s33, s29, 3
    s_add_u32 s21, s21, s33""")

FROW = 8
def FL(sid): return FL_OFF + 4096 + sid*65536
def signal(sid, mine, flagv):
    a(mine)
    a(f"s_lshl_b32 s56, s56, {FROW}\ns_lshl_b32 s57, s57, 3\ns_add_u32 s56, s56, s57\ns_add_u32 s56, s56, {FL(sid)}")
    a(f"v_mov_b32 v{flagv}, s100\nv_mov_b32 v{flagv+1}, s101\ns_mov_b64 exec, 1")
    vm(f"buffer_store_dwordx2 v[{flagv}:{flagv+1}], v3, s[8:11], s56 offen {SC}", ("f", sid))
    a("s_mov_b64 exec, -1")
def await_prep(sid, where, flagv):
    a(where)
    a(f"s_lshl_b32 s57, s57, {FROW}\ns_lshl_b32 s58, s58, 3\ns_add_u32 s57, s57, s58\ns_add_u32 s59, s57, {FL(sid)}")
    a(f"v_lshlrev_b32 v{flagv+2}, 3, v2")
def setexec(nfl):
    if nfl < 32: a(f"s_mov_b64 exec, {hex((1 << nfl) - 1)}")
    elif nfl < 64: a(f"s_mov_b32 exec_hi, {hex((1 << (nfl - 32)) - 1)}")
def await_(nfl, flagv):
    lab = a.label("sync")
    setexec(nfl)
    a("s_mov_b32 s58, 0x40000")
    a(f"{lab}_p:")
    a(f"buffer_load_dwordx2 v[{flagv}:{flagv+1}], v{flagv+2}, s[8:11], s59 offen {SC}")
    a("s_sub_u32 s58, s58, 1\ns_waitcnt vmcnt(0)")
    a(f"v_cmp_ne_u64 vcc, s[100:101], v[{flagv}:{flagv+1}]")
    a(f"s_cbranch_scc1 {lab}_x")
    a(f"s_cbranch_vccnz {lab}_p")
    a(f"{lab}_x:")
    a("s_mov_b64 exec, -1")

def k1_tables(MB, vmq, split=None):
    a("""v_lshrrev_b32 v23, 2, v8
    v_bfe_u32 v24, v8, 1, 1
    v_and_b32 v25, 1, v8""")
    a("s_mul_i32 s43, s24, 40\ns_add_u32 s43, s43, 1")
    a("v_lshlrev_b32 v26, 3, v23\nv_add3_u32 v26, v26, v24, s43")
    a("v_lshlrev_b32 v27, 1, v23\nv_add3_u32 v27, v27, v24, s43\nv_add_u32 v27, 32, v27")
    a("v_cvt_f32_u32 v26, v26\nv_cvt_f32_u32 v27, v27")
    for t in range(4):
        a(f"v_add_f32 v28, {f32(2.0*t)}, v26")
        a(f"v_mul_f32 v{12+t}, {f32(1.0/640)}, v28")
    a(f"v_mul_f32 v16, {f32(1.0/640)}, v27")
    a(f"v_cvt_f32_u32 v17, v25\nv_mul_f32 v17, {f32(0.25)}, v17")
    a("v_lshlrev_b32 v28, 3, v4\nv_lshl_add_u32 v28, v1, 1, v28\nv_cvt_f32_u32 v28, v28")
    for k in range(5): a(f"v_add_f32 v{18+k}, {f32(32.0*k)}, v28")
    a(f"""v_lshlrev_b32 v26, 31, v24
    v_xor_b32 v232, {f32(-1.0)}, v26
    v_or_b32 v26, v24, v25
    v_lshlrev_b32 v26, 31, v26
    v_xor_b32 v233, 1.0, v26
    v_xor_b32 v234, {f32(-1.0)}, v26
    v_lshlrev_b32 v26, 31, v23
    v_xor_b32 v235, v233, v26
    v_lshl_add_u32 v27, v1, 2, v3
    v_add_u32 v27, {MB}, v27""")
    for t in range(5):
        for k in range(5):
            r = 28 + ((t*5+k) % 4) * 3
            if split and t*5+k == split[0]: split[1]()
            a(f"v_fma_f32 v{r}, v{12+t}, v{18+k}, v17")
            a(f"v_add_f32 v{r+1}, v{r}, v{12+t}")
            a(f"v_cos_f32 v{r}, v{r}")
            a(f"v_cos_f32 v{r+1}, v{r+1}")
            if vmq: vm(*vmq.pop(0))
            a(f"v_cvt_pk_bf16_f32 v{r+2}, v{r}, v{r+1}")
            a(f"ds_write_b32 v27, v{r+2} offset:{(t*5+k)*1024}")
    assert not vmq
def k1_f64():
    a(f"v_lshl_add_u32 v28, v1, 4, v8\nv_cvt_f32_u32 v28, v28\nv_mul_f32 v28, {f32(1.0/64)}, v28")
    a("v_lshlrev_b32 v29, 4, v4\nv_cvt_f32_u32 v29, v29\nv_mul_f32 v29, v29, v28\nv_add_f32 v36, v28, v28")
    for p in range(2):
        for jj in range(4):
            a(f"s_mov_b32 s44, {f32(float(p + 4*jj))}")
            a(f"v_fma_f32 v30, v28, s44, v29")
            a(f"v_add_f32 v31, v30, v36")
            a(f"v_cos_f32 v32, v30\nv_cos_f32 v33, v31\nv_sin_f32 v34, v30\nv_sin_f32 v35, v31")
            a(f"v_cvt_pk_bf16_f32 v{200+4*p+jj}, v32, v33")
            a(f"v_cvt_pk_bf16_f32 v{208+4*p+jj}, -v34, -v35")
    for j in range(4): a(f"v_mov_b32 v{108+j}, 0x3f803f80")
    a("v_mul_u32_u24 v10, 80, v4")
def k1_mbread(MB):
    a(f"v_add_u32 v27, {MB}, v3")
    for f in range(25): a(f"ds_read_b128 a[{4*f}:{4*f+3}], v27 offset:{f*1024}")
def k1_main(layer, GT, sb, xq=None, ZSCR=None, mid=None, post=None):
    XF = lambda k: 120 + 4*k if layer else 216 + (k % 4) * 4
    ACC = lambda q, t: 20 + (q*5+t)*4
    def xread(k):
        wait_tags({("x", k | 1 if layer == 0 else k)})
        if layer == 0: a(f"ds_read_b128 v[{XF(k)}:{XF(k)+3}], v{5 if k & 1 else 9} offset:{2048*(k >> 1)}")
    xq = xq or []
    for _ in range(int(OPT.get("k1pre", 8)) if layer else 0):
        if xq: vm(*xq.pop(0))
    a("s_waitcnt lgkmcnt(0)")
    if layer == 0:
        xread(0); st(sb); xread(1)
    for k in range(20):
        q, kk = divmod(k, 5)
        if layer == 0:
            if k + 2 < 20: xread(k + 2); a("s_waitcnt lgkmcnt(2)")
            else: a(f"s_waitcnt lgkmcnt({19 - k})")
        else:
            xread(k)
            if k == 0: st(sb)
        x = f"v[{XF(k)}:{XF(k)+3}]"
        for t in range(5):
            c = f"v[{ACC(q,t)}:{ACC(q,t)+3}]"
            a(f"v_mfma_f32_16x16x32_bf16 {c}, {x}, a[{4*(t*5+kk)}:{4*(t*5+kk)+3}], {'0' if kk == 0 else c}")
            if t in (0, 3) and xq: vm(*xq.pop(0))
        a(f"v_mfma_f32_16x16x32_bf16 v[100:103], {x}, v[108:111], {'0' if k == 0 else 'v[100:103]'}")
        a(f"v_mfma_f32_16x16x32_bf16 v[104:107], {x}, {x}, {'0' if k == 0 else 'v[104:107]'}")
    st(sb + 1)
    if post: post()
    for t in range(5):
        for i in range(4):
            a(f"v_fmac_f32 v{ACC(0,t)+i}, v232, v{ACC(2,t)+i}")
            a(f"v_fmac_f32 v{ACC(1,t)+i}, v232, v{ACC(3,t)+i}")
        if t == 1:
            for i in range(4): a(f"ds_bpermute_b32 v{112+i}, v10, v{104+i} offset:{4*i}")
    a("s_waitcnt lgkmcnt(0)")
    ln_scalars([(100+i, 112+i) for i in range(4)])
    for i in range(4): a(f"v_rcp_f32 v{112+i}, v{112+i}")
    a("s_bitcmp1_b32 s24, 0\ns_cselect_b32 s44, 0x80000000, 0\nv_and_b32 v116, s44, v232")
    for i in range(4): a(f"v_xor_b32 v{112+i}, v116, v{112+i}")
    for t in range(5):
        sg = 235 if t == 4 else (233 if t % 2 == 0 else 234)
        for i in range(4):
            a(f"v_fmac_f32_dpp v{ACC(0,t)+i}, v{ACC(1,t)+i}, v{sg} quad_perm:[1,0,2,3] row_mask:0xf bank_mask:0xf")
    a(f"v_mul_u32_u24 v6, 144, v8\nv_lshlrev_b32 v7, 3, v4\nv_add3_u32 v6, v6, v7, {GT if GT <= 64 else 's45'}" if False else
      f"s_mov_b32 s45, {GT}\nv_mul_u32_u24 v6, 144, v8\nv_lshlrev_b32 v7, 3, v4\nv_add3_u32 v6, v6, v7, s45\ns_lshl_b32 s44, s32, 5\nv_add_u32 v9, s44, v6")
    for t in range(5):
        for i in range(4):
            a(f"v_mul_f32 v{ACC(0,t)+i}, v{ACC(0,t)+i}, v{112+i}")
        a(f"v_cvt_pk_bf16_f32 v{ACC(1,t)}, v{ACC(0,t)}, v{ACC(0,t)+1}")
        a(f"v_cvt_pk_bf16_f32 v{ACC(1,t)+1}, v{ACC(0,t)+2}, v{ACC(0,t)+3}")
        a(f"ds_write_b64 v9, v[{ACC(1,t)}:{ACC(1,t)+1}] offset:{t*16*144}")
    a(f"v_add_u32 v6, v6, v7")
    if mid: mid()
    a("s_waitcnt lgkmcnt(0)\ns_barrier")
    st(sb + 2)
    for t in range(5):
        for p in range(2):
            r = 120 + (t*2+p)*4
            a(f"ds_read_b128 v[{r}:{r+3}], v6 offset:{t*16*144 + 64*p}")
    ZL = ZSCR is not None
    if ZL:
        a(f"s_mul_i32 s45, s32, 2560\ns_add_u32 s45, s45, {ZSCR}\nv_mul_u32_u24 v10, 160, v8\nv_add_u32 v10, s45, v10\nv_add_u32 v12, s45, v3")
    else:
        a(f"v_lshl_add_u32 v10, v1, 4, v8\nv_mul_u32_u24 v10, 160, v10")
    a("v_lshl_add_u32 v11, v4, 2, v10\nv_lshl_add_u32 v10, v4, 4, v10")
    a(f"s_mul_i32 s44, s23, 81920\ns_mul_i32 s45, s24, 10240\ns_add_u32 s44, s44, s45\ns_add_u32 s44, s44, {Z_OFF(layer)}")
    if ZL: a("s_mul_i32 s45, s32, 2560\ns_add_u32 s44, s44, s45")
    T1 = lambda t: 20 + t*8
    T2 = lambda t: 24 + t*8
    for t in range(5):
        a(f"s_waitcnt lgkmcnt({8 - 2*t})")
        for p in range(2):
            r = 120 + (t*2+p)*4
            a(f"v_mfma_f32_16x16x32_bf16 v[{T1(t)}:{T1(t)+3}], v[{r}:{r+3}], v[{200+4*p}:{203+4*p}], {'0' if p == 0 else f'v[{T1(t)}:{T1(t)+3}]'}")
            a(f"v_mfma_f32_16x16x32_bf16 v[{T2(t)}:{T2(t)+3}], v[{r}:{r+3}], v[{208+4*p}:{211+4*p}], {'0' if p == 0 else f'v[{T2(t)}:{T2(t)+3}]'}")
    for t in range(5):
        b = 76 + 4*(t & 1)
        a(f"v_sub_f32 v{b}, v{T1(t)}, v{T2(t)+1}")
        a(f"v_sub_f32 v{b+1}, v{T1(t)+2}, v{T2(t)+3}")
        a(f"v_add_f32 v{b+2}, v{T2(t)}, v{T1(t)+1}")
        a(f"v_add_f32 v{b+3}, v{T2(t)+2}, v{T1(t)+3}")
        a(f"v_cvt_pk_bf16_f32 v{60+t}, v{b}, v{b+1}")
        a(f"v_cvt_pk_bf16_f32 v{68+t}, v{b+2}, v{b+3}")
    zsc = SC
    if ZL:
        a("ds_write_b128 v10, v[60:63]\nds_write_b128 v10, v[68:71] offset:80\nds_write_b32 v11, v64 offset:64\nds_write_b32 v11, v72 offset:144")
        a("s_waitcnt lgkmcnt(0)")
        for j in range(3): a(f"ds_read_b128 v[{84+4*j}:{87+4*j}], v12 offset:{1024*j}")
        for j in range(3):
            a(f"s_waitcnt lgkmcnt({2-j})")
            if j == 2: a("s_mov_b32 exec_hi, 0")
            vm(f"buffer_store_dwordx4 v[{84+4*j}:{87+4*j}], v3, s[8:11], s44 offen offset:{1024*j} {zsc}", ("s", 3))
        a("s_mov_b32 exec_hi, -1")
    else:
        vm(f"buffer_store_dwordx4 v[60:63], v10, s[8:11], s44 offen {zsc}", ("s", 3))
        vm(f"buffer_store_dwordx4 v[68:71], v10, s[8:11], s44 offen offset:80 {zsc}", ("s", 3))
        vm(f"buffer_store_dword v64, v11, s[8:11], s44 offen offset:64 {zsc}", ("s", 3))
        vm(f"buffer_store_dword v72, v11, s[8:11], s44 offen offset:144 {zsc}", ("s", 3))
    st(sb + 3)

def code_pf(lo, hi, vt, vd):
    if not int(OPT.get("cpf", 1)): return
    lab = a.label("pc")
    a(f"""s_getpc_b64 s[60:61]
    {lab}:
    s_add_u32 s60, s60, {lo} - {lab}
    s_addc_u32 s61, s61, {-1 if lo in PAST else 0}
    s_lshr_b32 s56, s2, 3
    s_lshl_b32 s56, s56, 2
    s_add_u32 s56, s56, s32
    s_lshl_b32 s56, s56, 10
    s_min_u32 s56, s56, {hi} - {lo} - 1024
    v_add_u32 v{vt}, s56, v3""")
    vm(f"global_load_dwordx4 v[{vd}:{vd+3}], v{vt}, s[60:61]", ("cp", 0))
PAST = {"interleave_layers__spectral_fnet__glu_gated_glu__prompt_kernel"}

LDS_A = 78080 + 81920
def phase_A(name):
    GT, MB, PP, XS = 0, 11520, 37120, 78080
    a(f"""v_xor_b32 v5, v4, v2
    v_and_b32 v5, 7, v5
    v_lshlrev_b32 v5, 4, v5
    v_lshrrev_b32 v6, 3, v2
    v_mul_u32_u24 v9, 81920, v6
    v_add_u32 v9, v9, v5
    v_xor_b32 v5, 64, v9
    v_add_u32 v5, {8*81920}, v5
    s_lshr_b32 s33, s32, 1
    s_lshl_b32 s33, s33, 5
    s_add_u32 s33, s33, s23
    s_and_b32 s34, s32, 1
    s_lshl_b32 s34, s34, 10
    s_add_u32 s33, s33, s34
    s_mul_i32 s33, s33, 1280
    s_mul_i32 s35, s32, 20480
    s_add_u32 s35, s35, {XS}""")
    a(f"""s_and_b32 s38, s2, 7
    s_lshr_b32 s37, s2, 3
    v_lshrrev_b32 v10, 3, v2
    v_mul_u32_u24 v10, 3072, v10
    v_and_b32 v11, 7, v2
    v_lshl_add_u32 v11, v11, 4, v10
    s_mul_i32 s40, s38, {80*3072}
    s_and_b32 s41, s32, 1
    s_mul_i32 s41, s41, {40*3072}
    s_add_u32 s40, s40, s41
    s_lshl_b32 s41, s37, 7
    s_add_u32 s40, s40, s41
    s_mul_i32 s42, s32, 5120
    s_add_u32 s42, s42, {PP}""")
    a("""s_and_b32 s34, s24, 1
    s_mul_i32 s34, s34, 640
    s_add_u32 s39, s33, 640
    s_sub_u32 s39, s39, s34
    s_add_u32 s33, s33, s34""")
    xd = [(f"s_add_u32 m0, s35, {1024*k - 128*((k % 10) >> 1)}\nbuffer_load_dwordx4 v{41 if k & 1 else 40}, s[12:15], s{33 if k < 10 else 39} offen offset:{128*((k % 10) >> 1)} lds", ("x", k)) for k in range(20)]
    a("v_mov_b32 v40, v9\nv_mov_b32 v41, v5")
    NX1 = int(OPT.get("nx1", 10))
    def xissue():
        a("s_waitcnt lgkmcnt(0)")
        srd(8, "s4", "s5", WS_BYTES); srd(12, "s6", "s7", XBYTES)
        st(8)
        for op in xd[:NX1]: vm(*op)
        a(f"s_add_u32 s60, s4, {FL_OFF}\ns_addc_u32 s61, s5, 0\ns_load_dwordx2 s[100:101], s[60:61], 0")
        code_pf(KN, "code_end", 42, 236)
        st(9)
    k1_tables(MB, [], (int(OPT.get("asplit", 10)), xissue))
    k1_f64()
    a("""v_lshrrev_b32 v29, 1, v8
    v_xor_b32 v29, v29, v4
    v_lshlrev_b32 v29, 4, v29
    v_lshl_add_u32 v9, v8, 7, v29
    v_xor_b32 v5, 64, v9
    v_add_u32 v9, s35, v9
    v_add_u32 v5, s35, v5
    v_bfe_u32 v13, v2, 2, 2          ; r
    v_and_b32 v14, 3, v2             ; c""")
    st(1)
    a("s_waitcnt lgkmcnt(0)\ns_barrier")
    a("s_add_u32 s100, s100, 0x7f4a7c15\ns_addc_u32 s101, s101, 0x9e3779b9")
    k1_mbread(MB)
    base = list(issued)
    a("s_cmp_ge_u32 s2, 192")
    a(f"s_cbranch_scc1 {name}_wd")
    for role in (0, 1):
        issued[:] = base
        pq = []
        if role == 0:
            a("s_cmp_lt_u32 s32, 2\ns_cselect_b32 s48, s16, s18\ns_cselect_b32 s49, s17, s19")
            a(f"s_mov_b32 s50, {WBYTES}\ns_mov_b32 s51, 0x20000")
            for i in range(5):
                pq.append((f"s_add_u32 m0, s42, {1024*i}\nbuffer_load_dwordx4 v11, s[48:51], s40 offen lds" + (f"\ns_add_u32 s40, s40, {8*3072}" if i < 4 else ""), ("p", 0)))
            prep = f"""v_lshrrev_b32 v15, 1, v4
            v_lshl_add_u32 v12, v15, 3, v13
            v_lshlrev_b32 v12, 7, v12
            v_lshrrev_b32 v15, 1, v14
            v_mul_u32_u24 v15, 10240, v15
            v_add_u32 v12, v12, v15
            v_and_b32 v15, 1, v14
            v_lshl_add_u32 v12, v15, 4, v12
            v_and_b32 v15, 1, v4
            v_lshl_add_u32 v12, v15, 3, v12
            s_lshl_b32 s45, s32, 5
            v_add_u32 v12, s45, v12
            s_lshl_b32 s45, s37, 2
            s_add_u32 s45, s45, s32
            s_mul_i32 s47, s45, 43
            s_lshr_b32 s47, s47, 8            ; cb
            s_mul_i32 s28, s47, 6
            s_sub_u32 s28, s45, s28           ; mu
            s_mul_i32 s29, s47, 245760
            s_add_u32 s29, s29, {WP_OFF}
            s_mul_i32 s30, s28, {40-KA}
            s_add_u32 s30, s30, {5*KA}
            s_mul_i32 s31, s38, 5
            s_mul_i32 s55, s38, 96
            s_add_u32 s55, s55, s45
            s_lshl_b32 s55, s55, 7
            s_add_u32 s55, s55, {CS_OFF}
            v_lshrrev_b32 v16, 5, v2
            v_lshlrev_b32 v16, 4, v16
            v_lshl_add_u32 v16, v14, 5, v16
            s_lshl_b32 s62, s47, 6
            s_lshl_b32 s63, s28, 3
            s_add_u32 s62, s62, s63
            s_add_u32 s62, s62, s38"""
        else:
            a(f"{name}_wd:")
            a(f"""s_sub_u32 s36, s2, 192
            s_mul_i32 s36, s36, 3
            s_min_u32 s41, s32, 2
            s_add_u32 s36, s36, s41
            s_mul_i32 s40, s36, 10240
            s_mul_i32 s42, s32, 10240
            s_add_u32 s42, s42, {PP}""")
            srd(48, "s26", "s27", WBYTES)
            for i in range(10):
                t = "s_add_u32 s40, s40, 4096\n" if i in (4, 8) else ""
                t += f"s_add_u32 m0, s42, {(i // 4) * 4096}\n"
                pq.append((t + f"buffer_load_dwordx4 v3, s[48:51], s40 offen offset:{1024*(i % 4)} lds", ("p", 0)))
            prep = f"""s_add_u32 s62, s36, 1024
            v_mul_u32_u24 v186, 1280, v13
            v_add_u32 v186, s42, v186
            s_lshr_b32 s28, s36, 2
            s_mul_i32 s28, s28, 5120
            s_and_b32 s45, s36, 3
            s_lshl_b32 s45, s45, 8
            s_add_u32 s28, s28, s45
            s_add_u32 s28, s28, {WDP_OFF}
            s_add_u32 s29, s28, {4*245760}
            s_mov_b32 s45, {245760 - 5*1024}
            v_lshlrev_b32 v187, 4, v8"""
            for pi in range(5):
                prep += f"""
                v_add_u32 v188, {4*pi}, v4
                v_mul_u32_u24 v189, 52, v188
                v_lshrrev_b32 v189, 8, v189
                v_mul_u32_u24 v12, 5, v189
                v_sub_u32 v12, v188, v12
                v_lshrrev_b32 v15, 1, v12
                v_lshlrev_b32 v15, 3, v15
                v_and_b32 v16, 1, v12
                v_add_u32 v15, v15, v16
                v_lshl_add_u32 v16, v14, 1, v15
                v_add_u32 v17, v14, v15
                v_cmp_gt_u32 vcc, 4, v12
                v_mul_u32_u24 v18, 20, v189
                v_mul_lo_u32 v189, v189, s45
                v_cndmask_b32 v16, v17, v16, vcc
                v_add_u32 v16, v16, v18
                v_lshl_add_u32 v{181+pi}, v16, 3, v186
                v_lshl_add_u32 v189, v188, 10, v189
                v_add_u32 v{176+pi}, v189, v187"""
        a(prep)
        rest = xd[NX1:]
        order = OPT.get("aord", "px")
        if order == "px": seq = pq + rest
        elif order == "xp": seq = rest + pq
        else:
            seq = []
            while pq or rest:
                if rest: seq += rest[:2]; rest = rest[2:]
                if pq: seq += pq[:1 + role]; pq = pq[1 + role:]
        for op in seq: vm(*op)
        st(10)
        def prepack():
            wait_tags({("p", 0)})
            if role == 0:
                a("s_barrier")
                for kk in range(5):
                    for s_ in range(2):
                        a(f"ds_read_b64_tr_b16 v[{120+4*kk+2*s_}:{121+4*kk+2*s_}], v12 offset:{PP + (16*kk + 4*s_)*128}")
                a("s_waitcnt lgkmcnt(0)")
                for kk in range(5):
                    a(f"""s_add_u32 s52, s31, {kk}
                    s_mul_i32 s53, s52, 6
                    s_add_u32 s53, s53, s28
                    s_add_u32 s54, s52, s30
                    s_cmp_lt_u32 s52, {KA}
                    s_cselect_b32 s53, s53, s54
                    s_lshl_b32 s53, s53, 10
                    s_add_u32 s53, s53, s29""")
                    a(f"v_mfma_f32_32x32x16_bf16 v[160:175], v[{120+4*kk}:{123+4*kk}], v[108:111], {'0' if kk == 0 else 'v[160:175]'}")
                    vm(f"buffer_store_dwordx4 v[{120+4*kk}:{123+4*kk}], v3, s[8:11], s53 offen {SC}", ("s", 4))
            else:
                for pi in range(10):
                    for p in range(2):
                        a(f"ds_read_b64_tr_b16 v[{120+pi*4+2*p}:{121+pi*4+2*p}], v{181 + pi % 5} offset:{p*5120 + (pi // 5)*640}")
                    if pi == 4: a("s_waitcnt lgkmcnt(0)")
                a("s_waitcnt lgkmcnt(0)")
                for pi in range(10):
                    vm(f"buffer_store_dwordx4 v[{120+pi*4}:{123+pi*4}], v{176 + pi % 5}, s[8:11], s{28 if pi < 5 else 29} offen {SC}", ("s", 4))
            st(7)
        def cs_store():
            if role: return
            for j in range(1, 4):
                a(f"v_cmp_eq_u32 vcc, {j}, v14")
                for i in range(4): a(f"v_cndmask_b32 v{160+i}, v{160+i}, v{160+4*j+i}, vcc")
            a("s_mov_b32 exec_lo, 15\ns_mov_b32 exec_hi, 15")
            vm(f"buffer_store_dwordx4 v[160:163], v16, s[8:11], s55 offen {SC}", ("s", 4))
            a("s_mov_b64 exec, -1")
        st(2)
        k1_main(0, GT, 3, None, MB if int(OPT.get("zlin", 1)) else None, mid=cs_store, post=prepack)
        if role == 0: a(f"s_branch {name}_join")
    a(f"{name}_join:")

WSC = [""]
def wops(c):
    out = []
    for i in range(6):
        t = ""
        if i == 0: t += f"s_add_u32 s27, s25, {c*SLOT}\ns_add_u32 m0, s26, {(c % NS)*SLOT}\n"
        if i == 4: t += f"s_add_u32 s27, s27, 4096\ns_add_u32 m0, s26, {(c % NS)*SLOT + 4096}\n"
        t += f"buffer_load_dwordx4 v3, s[8:11], s27 offen offset:{1024*(i % 4)} {WSC[0]} lds"
        out.append((t, ("W", c)))
    return out
ROT = int(OPT.get("rotw", 1)); ROTD = int(OPT.get("rotd", 0))
def wops_rot(c):
    out = []
    for i in range(6):
        t = ""
        if i == 0:
            if c: t += f"s_add_u32 s59, s59, {SLOT}\ns_cmp_ge_u32 s59, {5*SLOT}\ns_cselect_b32 s59, 0, s59\n"
            t += f"s_add_u32 s27, s25, s59\ns_add_u32 s28, s26, s59\ns_mov_b32 m0, s28\n"
        if i == 4: t += f"s_add_u32 s27, s27, 4096\ns_add_u32 m0, s28, 4096\n"
        t += f"buffer_load_dwordx4 v3, s[8:11], s27 offen offset:{1024*(i % 4)} lds"
        out.append((t, ("W", c)))
    return out
def krot(j):
    if j >= 10: return f"s_and_b32 s18, s19, 1\ns_xor_b32 s18, s18, {j}\n"
    g = 5*(j // 5)
    return f"s_add_u32 s18, s19, {j}\ns_sub_u32 s17, s18, 5\ns_cmp_ge_u32 s18, {g+5}\ns_cselect_b32 s18, s17, s18\n"
def WDR(f):
    if f < 24: r = 160 + 4*f; return f"a[{r}:{r+3}]"
    if f == 24: return "v[192:195]"
    if f < 49: r = 4*(f - 25); return f"a[{r}:{r+3}]"
    r = 196 + 4*(f - 49); return f"v[{r}:{r+3}]"
ORD = [0, 3, 6, 9, 1, 4, 7, 10, 2, 5, 8, 11]
def wdops(f0, f1):
    out = []
    for f in range(f0, f1):
        k, m = divmod(f, 5)
        t = ""
        if m == 0 or (f == f0 and m < 4): t = f"s_add_u32 s30, s31, {ORD[k]*5120}\n"
        if m == 4: t = f"s_add_u32 s30, s31, {ORD[k]*5120 + 4096}\n"
        out.append((t + f"buffer_load_dwordx4 {WDR(f)}, v3, s[8:11], s30 offen offset:{1024*(m % 4)} {WSC[0]}", ("D", f)))
    return out

def stream_bases():
    a(f"""s_mul_i32 s25, s21, 245760
    s_mul_i32 s26, s32, 6144
    s_add_u32 s25, s25, s26
    s_add_u32 s25, s25, {WP_OFF}
    s_mul_i32 s31, s24, 245760
    s_mul_i32 s30, s32, 61440
    s_add_u32 s31, s31, s30
    s_add_u32 s31, s31, {WDP_OFF}
    s_mul_i32 s29, s21, 768
    s_add_u32 s29, s29, {CS_OFF}
    s_mov_b32 s19, 0""")

def s2_setup(layer):
    ZS = 5*SLOT
    a("""s_and_b32 s33, s21, 7
    s_lshr_b32 s34, s21, 3
    s_and_b32 s35, s32, 1
    s_xor_b32 s34, s34, s35
    s_sub_u32 s36, 32, s20
    s_cmp_eq_u32 s20, 0
    s_cselect_b32 s36, 16, s36
    s_cmp_eq_u32 s34, 0
    s_cselect_b32 s36, s20, s36
    s_lshl_b32 s37, s35, 5
    s_add_u32 s36, s36, s37           ; k
    s_sub_u32 s37, 64, s36
    s_and_b32 s37, s37, 63
    s_cmp_lt_u32 s32, 2
    s_cselect_b32 s37, s36, s37       ; ksrc
    s_cselect_b32 s39, -2, 0
    s_lshl_b32 s38, s20, 1
    s_add_u32 s38, s38, s34
    s_lshl_b32 s38, s38, 1
    s_add_u32 s38, s38, s35
    s_lshl_b32 s38, s38, 1""")
    for i in range(5):
        a(f"""v_add_u32 v20, {64*i}, v2
        v_mul_u32_u24 v21, 13108, v20
        v_lshrrev_b32 v21, 17, v21
        v_mul_u32_u24 v22, {81920 - 160}, v21
        v_lshl_add_u32 v{10+i}, v20, 4, v22""")
    a(f"""v_lshrrev_b32 v20, 1, v2
    v_mul_u32_u24 v20, 81920, v20
    v_and_b32 v21, 1, v2
    v_mul_u32_u24 v21, 80, v21
    v_add_u32 v47, v20, v21
    s_mul_i32 s40, s37, 160
    s_add_u32 s40, s40, s39
    s_mul_i32 s41, s33, 10240
    s_add_u32 s40, s40, s41
    s_add_u32 s40, s40, {Z_OFF(layer)}
    s_sub_u32 s41, s40, {10240 - 80}
    s_mul_i32 s42, s32, 6144
    s_add_u32 s42, s42, {ZS}
    s_mul_i32 s43, s33, 5
    s_sub_u32 s44, 75, s43
    s_cmp_lt_u32 s32, 2
    s_cselect_b32 s43, s43, s44
    v_lshlrev_b32 v5, 4, v8
    v_lshl_add_u32 v5, v4, 3, v5
    s_mul_i32 s44, s38, 20480
    s_lshl_b32 s45, s43, 8
    s_add_u32 s44, s44, s45""")
    if layer == 0:
        a("""v_mul_u32_u24 v6, 81920, v8
        v_lshl_add_u32 v7, v4, 3, v6
        v_lshl_add_u32 v6, v4, 4, v6
        s_mul_i32 s46, s36, 1280
        s_lshl_b32 s45, s43, 4
        s_add_u32 s46, s46, s45
        s_add_u32 s47, s46, 1310720""")
    else:
        a(f"s_add_u32 s46, s44, {X2_OFF}\ns_add_u32 s47, s46, 20480")
    a(f"""v_lshlrev_b32 v36, 6, v8
    v_add_u32 v36, s36, v36
    v_cvt_f32_u32 v36, v36
    v_mul_f32 v36, {f32(1.0/2048)}, v36
    v_lshlrev_b32 v38, 2, v4
    v_cvt_f32_u32 v38, v38
    s_cmp_lt_u32 s32, 2
    s_cselect_b32 s48, 0, 0x80000000""")
def s2_fgen(nt):
    if nt: a("v_add_f32 v36, 0.5, v36")
    a("v_mul_f32 v37, v38, v36")
    for p in range(2):
        for jj in range(4):
            r = 40 + (jj & 1)*3
            a(f"s_mov_b32 s49, {f32(float(16*p + jj))}")
            a(f"v_fma_f32 v{r}, v36, s49, v37")
            a(f"v_cos_f32 v{r+1}, v{r}\nv_sin_f32 v{r+2}, v{r}")
            a(f"v_xor_b32 v{r+2}, s48, v{r+2}")
            a(f"v_cvt_pk_bf16_f32 v{20+8*nt+4*p+jj}, v{r+1}, v{r+2}")
def s2_setup2(layer):
    a("""v_bfe_u32 v15, v2, 2, 2
    v_and_b32 v16, 3, v2
    v_lshl_add_u32 v17, v4, 3, v15
    v_mul_u32_u24 v17, 80, v17
    v_add_u32 v17, s42, v17
    v_and_b32 v18, 1, v16
    v_add_u32 v96, s42, v3
    v_mul_u32_u24 v97, 80, v2
    v_add_u32 v97, s42, v97""")
    a(f"""s_lshl_b32 s50, s38, 11
    s_lshl_b32 s51, s33, 8
    s_add_u32 s50, s50, s51
    s_lshr_b32 s51, s32, 1
    s_lshl_b32 s51, s51, 7
    s_add_u32 s50, s50, s51
    s_add_u32 s50, s50, {ST_OFF(layer)}
    s_add_u32 s44, s44, {X1_OFF(layer)}
    s_add_u32 s45, s44, 20480
    v_lshlrev_b32 v9, 3, v8
    v_lshl_add_u32 v9, v4, 11, v9
    v_mov_b32 v39, 0x3f803f80
    s_mov_b32 s52, -1
    s_mov_b32 s53, 0""")
S2XF = lambda nt: 100 + 6*nt
def s2_loads(layer):
    sc = SC
    for i in range(5): vm(f"buffer_load_dwordx4 v[{120+4*i}:{123+4*i}], v{10+i}, s[8:11], s40 offen {sc}", ("z", layer))
    vm(f"buffer_load_ushort v98, v47, s[8:11], s41 offen {sc}", ("z", layer))
    XF = S2XF
    for nt in range(2):
        if layer == 0:
            vm(f"buffer_load_dwordx4 v[{XF(nt)}:{XF(nt)+3}], v6, s[12:15], s{46+nt} offen", ("r", 0))
            vm(f"buffer_load_dwordx2 v[{XF(nt)+4}:{XF(nt)+5}], v7, s[12:15], s{46+nt} offen offset:64", ("r", 0))
        else:
            vm(f"buffer_load_dwordx4 v[{XF(nt)}:{XF(nt)+3}], v3, s[8:11], s{46+nt} offen {sc}", ("r", 1))
            vm(f"buffer_load_dwordx2 v[{XF(nt)+4}:{XF(nt)+5}], v5, s[8:11], s{46+nt} offen offset:1024 {sc}", ("r", 1))
def s2_compute(name, layer):
    XF = S2XF
    ACC = lambda nt, tl: 48 + (nt*3+tl)*4
    AF = lambda tl, p: 72 + (tl*2+p)*4
    wait_tags({("z", layer)})
    for i in range(5): a(f"ds_write_b128 v96, v[{120+4*i}:{123+4*i}] offset:{1024*i}")
    a("s_cmp_ge_u32 s32, 2")
    a(f"s_cbranch_scc1 {name}_right")
    base = list(issued)
    for right in (0, 1):
        issued[:] = base
        if right:
            a(f"{name}_right:")
            a("v_lshlrev_b32 v16, 4, v16\nv_sub_u32 v19, v17, v16\nv_add_u32 v19, 64, v19\nv_lshlrev_b32 v18, 3, v18\nv_sub_u32 v46, v17, v18\nv_add_u32 v46, 8, v46")
        else:
            a("ds_write_b16 v97, v98")
            a("v_lshl_add_u32 v19, v16, 4, v17\nv_lshl_add_u32 v46, v18, 3, v17\nv_add_u32 v46, 64, v46")
        for tl in range(3):
            for p in range(2):
                for s in range(2):
                    off = (32*p + 4*s)*80 + (0 if tl == 2 else ((8 - 8*tl) if right else 8*tl))
                    r = AF(tl, p) + 2*s
                    a(f"ds_read_b64_tr_b16 v[{r}:{r+1}], v{46 if tl == 2 else 19} offset:{off}")
        wait_tags({("r", layer)})
        for nt in range(2):
            for dw in range(6):
                tl, lo = dw >> 1, (dw & 1) * 2
                i0, i1 = (3 - lo, 2 - lo) if right else (lo, lo + 1)
                a(f"v_lshlrev_b32 v{ACC(nt,tl)+i0}, 16, v{XF(nt)+dw}")
                a(f"v_and_b32 v{ACC(nt,tl)+i1}, 0xffff0000, v{XF(nt)+dw}")
        if not right: a(f"v_mov_b32 v40, v{ACC(0,0)}\nv_mov_b32 v41, v{ACC(1,0)}")
        for tl in range(3):
            a(f"s_waitcnt lgkmcnt({8 - 4*tl})")
            for p in range(2):
                for nt in range(2):
                    c = f"v[{ACC(nt,tl)}:{ACC(nt,tl)+3}]"
                    a(f"v_mfma_f32_16x16x32_bf16 {c}, v[{AF(tl,p)}:{AF(tl,p)+3}], v[{20+8*nt+4*p}:{23+8*nt+4*p}], {c}")
        if not right:
            a("s_cmp_eq_u32 s33, 0\ns_cselect_b32 s54, 0xffff, 0\ns_mov_b32 s55, 0")
            a(f"v_cndmask_b32 v{ACC(0,0)}, v{ACC(0,0)}, v40, s[54:55]")
            a(f"v_cndmask_b32 v{ACC(1,0)}, v{ACC(1,0)}, v41, s[54:55]")
        for nt in range(2):
            for dw in range(6):
                tl, lo = dw >> 1, (dw & 1) * 2
                i0, i1 = (3 - lo, 2 - lo) if right else (lo, lo + 1)
                a(f"v_cvt_pk_bf16_f32 v{XF(nt)+dw}, v{ACC(nt,tl)+i0}, v{ACC(nt,tl)+i1}")
            vm(f"buffer_store_dwordx4 v[{XF(nt)}:{XF(nt)+3}], v3, s[8:11], s{44+nt} offen {SC}", ("s", 10 + layer))
        a("s_mov_b64 exec, s[52:53]")
        for nt in range(2):
            vm(f"buffer_store_dwordx2 v[{XF(nt)+4}:{XF(nt)+5}], v5, s[8:11], s{44+nt} offen offset:1024 {SC}", ("s", 10 + layer))
        a("s_mov_b64 exec, -1")
        for nt in range(2):
            for j in range(2):
                a(f"v_cndmask_b32 v{72+2*nt+j}, 0, v{XF(nt)+4+j}, s[52:53]")
        for nt in range(2):
            for dw in range(6):
                src = XF(nt)+dw if dw < 4 else 72+2*nt+dw-4
                c0 = "0" if dw == 0 else f"v{40+2*nt}"; c1 = "0" if dw == 0 else f"v{41+2*nt}"
                a(f"v_dot2_f32_bf16 v{40+2*nt}, v{src}, v39, {c0}")
                a(f"v_dot2_f32_bf16 v{41+2*nt}, v{src}, v{src}, {c1}")
        reduce_lanes([40, 41, 42, 43], 76)
        a("s_mov_b64 exec, 0xffff0000\nv_mov_b32 v40, v42\nv_mov_b32 v41, v43\ns_mov_b64 exec, s[52:53]")
        vm(f"buffer_store_dwordx2 v[40:41], v9, s[8:11], s50 offen {SC}", ("s", 10 + layer))
        a("s_mov_b64 exec, -1")
        if not right: a(f"s_branch {name}_s2done")
    a(f"{name}_s2done:")
def cs_loads():
    return [(f"buffer_load_dword v{112+p}, v99, s[8:11], s29 offen {SC}" + ("\ns_add_u32 s29, s29, 12288" if p < 7 else ""), ("c", 0)) for p in range(8)]
def cs_final(name):
    wait_tags({("c", 0)})
    a(f"""v_add_f32 v112, v112, v113
    v_add_f32 v114, v114, v115
    v_add_f32 v116, v116, v117
    v_add_f32 v118, v118, v119
    v_add_f32 v112, v112, v114
    v_add_f32 v116, v116, v118
    v_add_f32 v112, v112, v116
    v_cvt_pk_bf16_f32 v113, v112, v112
    v_lshlrev_b32 v113, 16, v113
    v_sub_f32 v113, v112, v113
    v_cvt_pk_bf16_f32 v112, v112, v113
    v_mov_b32 v113, 0
    v_mov_b32 v114, 0
    v_mov_b32 v115, 0
    v_lshlrev_b32 v99, 2, v99
    v_add_u32 v99, {CSL}, v99
    s_cmp_eq_u32 s32, 3
    s_cbranch_scc1 {name}_nocs
    ds_write_b128 v99, v[112:115]
    {name}_nocs:
    s_waitcnt lgkmcnt(0)""")

def glu1_phase(layer):
    D = int(OPT.get("g1d", 8)); R = D + 2
    AFB = 112; OUT = AFB + 4*R; SV = OUT + 8
    assert SV + 16 <= 192
    a(f"""s_lshl_b32 s33, s20, 2
    s_add_u32 s33, s33, s32           ; T
    s_mul_i32 s34, s33, 40960
    s_add_u32 s34, s34, {X1_OFF(layer)}
    s_mul_i32 s40, s33, 98304
    s_mul_i32 s41, s21, 3072
    s_add_u32 s40, s40, s41
    s_add_u32 s40, s40, {H_OFF(layer)}
    s_lshl_b32 s43, s33, 12
    s_add_u32 s43, s43, {ST_OFF(layer)}
    v_and_b32 v9, 1, v4
    v_lshrrev_b32 v10, 1, v4
    v_lshlrev_b32 v11, 4, v8
    v_lshl_add_u32 v11, v10, 8, v11
    v_mul_u32_u24 v12, 20480, v9
    v_add_u32 v12, v12, v11           ; x voffset
    v_mul_u32_u24 v13, 49152, v9
    v_add_u32 v13, v13, v11           ; h voffset
    v_and_b32 v14, 31, v2
    v_lshlrev_b32 v15, 3, v8
    v_lshl_add_u32 v15, v9, 11, v15
    v_lshl_add_u32 v15, v10, 10, v15
    v_lshlrev_b32 v14, 4, v14
    v_add_u32 v14, {CSL}, v14
    v_add_u32 v5, {2*SLOT}, v3
    v_add_u32 v6, {4*SLOT}, v3
    s_mov_b32 s46, -1
    s_mov_b32 s47, 0""")
    return D, R, AFB, OUT, SV

def glu1_main(layer, P, hooks, shift=0):
    D, R, AFB, OUT, SV = P[:5]
    order = sorted([(wp_pos(k, m), k, m) for k in range(40) for m in range(6)])
    def xop(k):
        t = f"s_add_u32 s39, s34, {k*512}\n" if k % 8 == 0 else ""
        return (t + f"buffer_load_dwordx4 a[{4*k}:{4*k+3}], v12, s[8:11], s39 offen offset:{512*(k % 8)} {SC}", ("X", k))
    slots = {}
    def put(i, op): slots.setdefault(i + shift, []).append(op)
    early = [xop(k) for k in range(4, 8)] + [xop(k) for k in range(8, 40)] + [(f"buffer_load_dwordx2 v[{SV+2*j}:{SV+2*j+1}], v15, s[8:11], s43 offen offset:{128*j} {SC}", ("T", 0)) for j in range(8)]
    for j, op in enumerate(early): put(2*j - (j > 8)*0, op)
    left = list(P[5])
    mid = wops(6) + left[:len(left)//2] + wops(7) + left[len(left)//2:] + wops(8)
    for j, op in enumerate(mid): put(90 + int(j * 53 / len(mid)), op)
    late = wdops(25, 30) + wops(9) + wdops(30, 50)
    for j, op in enumerate(late): put(146 + int(j * float(OPT.get('latesp', 2.5))), op)
    ACC = lambda m: 16 + 16*m
    seq = []
    for i, (p, k, m) in enumerate(order):
        seq.append(("f", i, k, m))
        if k == 39: seq.append(("e", i, 40, m))
    N = len(seq)
    AF = lambda j: AFB + (j % R)*4
    LB = {0: 3, 1: 5, 2: 6}
    def aread(j):
        kind, i, k, m = seq[j]
        if kind == "f":
            c, o = divmod(i, 24); slot = c % NS
            a(f"ds_read_b128 v[{AF(j)}:{AF(j)+3}], v{LB[slot // 2]} offset:{(slot & 1)*SLOT + o*1024}")
        else:
            a(f"ds_read_b128 v[{AF(j)}:{AF(j)+3}], v14 offset:{m*512}")
    CT, SD, XB = SV, SV + 1, SV + 4
    def stats():
        for j in (0, 4, 8, 12): a(f"v_add_f32 v{SV+j}, v{SV+j}, v{SV+j+2}\nv_add_f32 v{SV+j+1}, v{SV+j+1}, v{SV+j+3}")
        for j in (0, 8): a(f"v_add_f32 v{SV+j}, v{SV+j}, v{SV+j+4}\nv_add_f32 v{SV+j+1}, v{SV+j+1}, v{SV+j+5}")
        a(f"v_add_f32 v{SV}, v{SV}, v{SV+8}\nv_add_f32 v{SV+1}, v{SV+1}, v{SV+9}")
        reduce_lanes([SV, SV+1], SV+2, steps=(32,))
        ln_scalars([(SV, SV+1)])
        a(f"v_cvt_pk_bf16_f32 v{SV+2}, -v{SV}, -v{SV}")
        a(f"v_rcp_f32 v{SV}, v{SV+1}")
        a(f"v_cndmask_b32 v{XB}, 0, v{SV+2}, s[46:47]\nv_mov_b32 v{XB+1}, 0\nv_mov_b32 v{XB+2}, 0\nv_mov_b32 v{XB+3}, 0")
        a(f"v_mul_f32 v{SV}, {f32(-1.4426950408889634)}, v{SV}")
    def epi(m):
        A = ACC(m); gi = [0,1,2,3,8,9,10,11]; ui = [4,5,6,7,12,13,14,15]; o = OUT + 4*(m & 1)
        ops = []
        for h in range(2):
            js = range(4*h, 4*h+4)
            for j in js: ops.append(f"v_mul_f32 v{A+gi[j]}, v{CT}, v{A+gi[j]}")
            for j in js: ops.append(f"v_exp_f32 v{A+gi[j]}, v{A+gi[j]}")
            for j in js: ops.append(f"v_fma_f32 v{A+gi[j]}, v{A+gi[j]}, v{SD}, v{SD}")
            for j in js: ops.append(f"v_rcp_f32 v{A+gi[j]}, v{A+gi[j]}")
            for j in js: ops.append(f"v_mul_f32 v{A+gi[j]}, v{A+gi[j]}, v{A+ui[j]}")
            for j in (2*h, 2*h+1): ops.append(f"v_cvt_pk_bf16_f32 v{o+j}, v{A+gi[2*j]}, v{A+gi[2*j+1]}")
        ops.append(f"buffer_store_dwordx4 v[{o}:{o+3}], v13, s[8:11], s40 offen offset:{m*512} {SC}")
        return ops
    for j in range(D): aread(j)
    pend = []; donex = set()
    for j, (kind, i, k, m) in enumerate(seq):
        if kind == "f" and i == 1: st(5)
        if kind == "f" and i == 72: st(6)
        if kind == "f" and i == 144: st(7)
        nxt = j + D
        if nxt < N and seq[nxt][0] == "f" and seq[nxt][1] % 24 == 0:
            wait_tags({("W", seq[nxt][1] // 24)}); a("s_barrier")
        if kind == "f" and k not in donex:
            wait_tags({("X", k)}); donex.add(k)
        if kind == "f" and i == 110:
            wait_tags({("T", 0)}); pend = capture(stats)
        a(f"s_waitcnt lgkmcnt({min(D - 1, N - 1 - j)})")
        cc = f"v[{ACC(m)}:{ACC(m)+15}]"
        b = f"a[{4*k}:{4*k+3}]" if kind == "f" else f"v[{XB}:{XB+3}]"
        a(f"v_mfma_f32_32x32x16_bf16 {cc}, v[{AF(j)}:{AF(j)+3}], {b}, {'0' if k == 0 else cc}")
        if nxt < N: aread(nxt)
        if kind == "f":
            for op in slots.pop(i, []):
                if op[1][0] in OPT.get("g1skip", ""): issued.insert(0, op[1])
                else: vm(*op)
            if k == KA + 1 and m > 0:
                assert not pend
                pend = epi(m - 1)
        for _ in range(3):
            if pend:
                op = pend.pop(0)
                if op.startswith("buffer"): vm(op, ("hs", m - 1))
                elif "V" not in OPT.get("g1skip", ""): a(op)
        if kind == "f" and i in hooks: hooks[i]()
    assert not pend and not slots, (pend, slots)
    st(8)
    hooks["end"]()
    for op in epi(5):
        if op.startswith("buffer"): vm(op, ("hs", 5))
        else: a(op)

def glu2_early(layer):
    for n in range(4):
        a(f"""s_add_u32 s56, s32, {n}
        s_and_b32 s56, s56, 3
        s_lshl_b32 s57, s22, 2
        s_add_u32 s57, s57, s56
        s_mul_i32 s57, s57, 49152
        s_mul_i32 s56, s32, 12288
        s_add_u32 s57, s57, s56
        s_add_u32 s{48+n}, s57, {H_OFF(layer)}""")
    a("""s_lshl_b32 s56, s22, 2
    s_add_u32 s56, s56, s32
    s_mul_i32 s56, s56, 20480
    s_mul_i32 s57, s24, 2560
    s_add_u32 s52, s56, s57""")
def glu2_late(layer):
    a(f"""s_add_u32 s45, s52, {X1_OFF(layer)}
    v_lshrrev_b32 v5, 1, v4
    v_lshlrev_b32 v5, 8, v5
    v_lshl_add_u32 v5, v8, 4, v5
    v_and_b32 v6, 1, v4
    v_lshl_add_u32 v5, v6, 3, v5""")
    for n in range(1, 4):
        a(f"""s_add_u32 s33, s32, {n}
        s_and_b32 s33, s33, 3
        s_lshl_b32 s34, s33, 2
        s_add_u32 s34, s34, s32
        s_mul_i32 s34, s34, 5120
        v_add_u32 v{9+n}, s34, v3
        s_lshl_b32 s34, s32, 2
        s_add_u32 s33, s33, s34
        s_mul_i32 s33, s33, 5120
        v_add_u32 v{12+n}, s33, v3""")
    if layer == 1:
        a("""s_lshr_b32 s33, s32, 1
        s_lshl_b32 s33, s33, 5
        s_add_u32 s33, s33, s23
        s_and_b32 s34, s32, 1
        s_lshl_b32 s34, s34, 10
        s_add_u32 s33, s33, s34
        s_mul_i32 s33, s33, 1280
        s_mul_i32 s34, s24, 160
        s_add_u32 s44, s33, s34
        v_mul_u32_u24 v6, 81920, v8
        v_lshl_add_u32 v7, v4, 3, v6
        v_lshl_add_u32 v6, v4, 4, v6""")
        srd(12, "s98", "s99", XBYTES)
    else:
        a(f"s_add_u32 s44, s52, {X2_OFF}")

def poll_issue(flagv, nfl, tag):
    setexec(nfl)
    vm(f"buffer_load_dwordx2 v[{flagv}:{flagv+1}], v{flagv+2}, s[8:11], s59 offen {SC}", tag)
    a("s_mov_b64 exec, -1")
def poll_check(flagv, nfl, tag):
    lab = a.label("chk")
    wait_tags({tag})
    setexec(nfl)
    a(f"v_cmp_ne_u64 vcc, s[100:101], v[{flagv}:{flagv+1}]\ns_mov_b64 exec, -1\ns_cbranch_vccz {lab}")
    await_(nfl, flagv)
    a(f"{lab}:")

def glu2_main(layer, sigB, where):
    def HR(k, n):
        sl = k % 10
        r = 96 + sl*16 + 4*n if sl < 6 else 96 + (sl - 6)*16 + 4*n
        return f"{'v' if sl < 6 else 'a'}[{r}:{r+3}]"
    X = 240
    def ops(k):
        return [(f"s_add_u32 s17, s{48+n}, {ORD[k]*1024}\nbuffer_load_dwordx4 {HR(k,n)}, v3, s[8:11], s17 offen {SC}", ("h", k)) for n in range(4)]
    xops = [(f"buffer_load_dwordx4 v[{X}:{X+3}], v3, s[8:11], s45 offen {SC}", ("x1", 0)), (f"buffer_load_dwordx4 v[{X+4}:{X+7}], v3, s[8:11], s45 offen offset:1024 {SC}", ("x1", 0)),
            (f"buffer_load_dwordx2 v[{X+8}:{X+9}], v5, s[8:11], s45 offen offset:2048 {SC}", ("x1", 0))]
    for k in range(4):
        for o in ops(k): vm(*o)
        if k == int(OPT.get("pi1", 1)):
            where(1); poll_issue(252, 8, ("pb", 2*layer + 1))
    wait_tags({("hs", 5)})
    st(9)
    sigB()
    fill = capture(lambda: glu2_late(layer))
    PC2 = int(OPT.get("pc2", 4))
    plan = {0: ops(4) + ops(5), 1: ops(6) + ops(7), 7: xops}
    plan[PC2] = plan.get(PC2, []) + ops(8) + ops(9); plan[PC2 + 1] = plan.get(PC2 + 1, []) + ops(10) + ops(11)
    PI = {int(OPT.get("pi2", 1)): 2}
    PC = {0: 1, PC2: 2}
    ACC = lambda n, m: 16 + (n*5+m)*4
    DEF = int(OPT.get("g2def", 3))
    def mf(k, n, m):
        c = f"v[{ACC(n,m)}:{ACC(n,m)+3}]"
        a(f"v_mfma_f32_16x16x32_bf16 {c}, {WDR(5*k+m)}, {HR(k,n)}, {'0' if k == 0 else c}")
    for k in range(12):
        if k in PC: poll_check(252, 8, ("pb", 2*layer + PC[k]))
        wait_tags({("h", k)} | {("D", 5*k + m) for m in range(5)})
        if k == 0: st(10)
        if k in (1, 2, 4, 5, 6, 8, 10): st({1: 1, 2: 2, 4: 3, 5: 4, 6: 5, 8: 6, 10: 7}[k], "g2")
        if k == 9: a("s_barrier")
        pend = list(plan.get(k, []))
        j = 0
        for n in ((1, 2, 3, 0) if k < 12 - DEF else (1, 2, 3)):
            for m in range(5):
                mf(k, n, m)
                j += 1
                if j % 2 == 1 and pend: vm(*pend.pop(0))
                elif fill and k in (0, 1, 2):
                    a(fill.pop(0))
                    if fill: a(fill.pop(0))
        assert not pend
        if k in PI:
            where(PI[k]); poll_issue(252, 8, ("pb", 2*layer + PI[k]))
    assert not fill
    wr = [f"ds_write_b128 v{9+n}, v[{ACC(n,m)}:{ACC(n,m)+3}] offset:{m*1024}" for n in (1, 2, 3) for m in range(5)]
    for k in range(12 - DEF, 12):
        for m in range(5):
            mf(k, 0, m)
            if wr: a(wr.pop(0))
    for w_ in wr: a(w_)
    st(11)
    wait_tags({("x1", 0)})
    XR = lambda m, d: X + (m >> 1)*4 + (m & 1)*2 + d if m < 4 else X + 8 + d
    a("s_waitcnt lgkmcnt(0)\ns_barrier")
    for n in range(1, 4):
        for m in range(5):
            a(f"ds_read_b128 v[{ACC(n,m)}:{ACC(n,m)+3}], v{12+n} offset:{m*1024}")
    for m in range(5):
        for d in range(2):
            a(f"v_lshlrev_b32 v250, 16, v{XR(m,d)}\nv_and_b32 v251, 0xffff0000, v{XR(m,d)}")
            a(f"v_add_f32 v{ACC(0,m)+2*d}, v{ACC(0,m)+2*d}, v250\nv_add_f32 v{ACC(0,m)+2*d+1}, v{ACC(0,m)+2*d+1}, v251")
    for n in range(1, 4):
        a(f"s_waitcnt lgkmcnt({5*(3-n)})")
        for m in range(5):
            for i in range(4):
                a(f"v_add_f32 v{ACC(0,m)+i}, v{ACC(0,m)+i}, v{ACC(n,m)+i}")
    for m in range(5):
        for d in range(2):
            a(f"v_cvt_pk_bf16_f32 v{XR(m,d)}, v{ACC(0,m)+2*d}, v{ACC(0,m)+2*d+1}")
    if layer == 1:
        a(f"buffer_store_dwordx4 v[{X}:{X+3}], v6, s[12:15], s44 offen")
        a(f"buffer_store_dwordx4 v[{X+4}:{X+7}], v6, s[12:15], s44 offen offset:64")
        a(f"buffer_store_dwordx2 v[{X+8}:{X+9}], v7, s[12:15], s44 offen offset:128")
    else:
        vm(f"buffer_store_dwordx4 v[{X}:{X+3}], v3, s[8:11], s44 offen {SC}", ("s", 2))
        vm(f"buffer_store_dwordx4 v[{X+4}:{X+7}], v3, s[8:11], s44 offen offset:1024 {SC}", ("s", 2))
        vm(f"buffer_store_dwordx2 v[{X+8}:{X+9}], v5, s[8:11], s44 offen offset:2048 {SC}", ("s", 2))

NVAR = int(OPT.get("nvar", 2))
VBIT = int(OPT.get("vbit", 0))
def variants(lab, body):
    if NVAR == 1: body(0); return
    base = list(issued)
    a(f"s_bitcmp1_b32 s32, {VBIT}\ns_cbranch_scc1 {lab}_v1")
    body(0); a(f"s_branch {lab}_vj")
    issued[:] = base
    a(f"{lab}_v1:")
    body(1)
    a(f"{lab}_vj:")

def clear_tags():
    for j, t in enumerate(issued): issued[j] = ("old", 0)

def gen_B():
    name = "interleave_layers__spectral_fnet__glu_gated_glu__prompt_kernel"
    global PROFILE
    prof = PROFILE
    PL = int(OPT.get("proflayer", 1))
    begin(name, 256)
    PROFILE = prof and PL == 2
    a("s_load_dwordx2 s[4:5], s[0:1], 88")
    a("s_load_dwordx2 s[6:7], s[0:1], 0")
    a("s_load_dwordx4 s[16:19], s[0:1], 48")
    a("s_load_dwordx2 s[26:27], s[0:1], 64")
    a("s_load_dwordx2 s[98:99], s[0:1], 72")
    decode_rb(); decode_theta(); lane_ids()
    phase_A("pa")
    stream_bases()
    ND, NA = int(OPT.get("wdrain", 10)), int(OPT.get("wafter", 20))
    pf = []
    def take(n, stop=None):
        for _ in range(n):
            if not pf or pf[0][1] == stop: break
            vm(*pf.pop(0))
    def z_wait(sid, bar=True):
        a(f"""s_cmp_lt_u32 s32, 2
        s_cselect_b32 s57, 1024, 0
        s_cmp_eq_u32 s33, 0
        s_cselect_b32 s57, 0, s57
        v_lshrrev_b32 v252, 5, v2
        v_mul_lo_u32 v252, v252, s57
        v_and_b32 v254, 31, v2
        v_lshlrev_b32 v254, 3, v254
        v_sub_u32 v254, v254, v252
        v_add_u32 v254, 1024, v254
        s_lshl_b32 s57, s33, 10
        s_lshr_b32 s58, s37, 4
        s_lshl_b32 s58, s58, 8
        s_add_u32 s57, s57, s58
        s_add_u32 s59, s57, {FL(sid) - 1024}""")
        if bar: a("s_barrier")
        await_(64, 252)
    for layer in range(2):
        lname = f"fb{layer}"
        WSC[0] = SC if layer == 0 else ""
        if layer == 0:
            s2_setup(0); a("v_lshlrev_b32 v99, 2, v0"); s2_fgen(0)
            wait_tags({("s", 3)})
            st(11)
            signal(7, "s_lshl_b32 s56, s24, 2\ns_add_u32 s56, s56, s32\ns_mov_b32 s57, s22", 252)
            signal(8, "s_lshr_b32 s56, s62, 5\ns_and_b32 s57, s62, 31", 252)
            s2_fgen(1); s2_setup2(0)
            st(12)
            z_wait(7)
            st(13)
            PROFILE = prof and PL == 0
            await_prep(8, "s_lshl_b32 s57, s21, 1\ns_mov_b32 s58, 0", 252); poll_issue(252, 48, ("pw", 0))
            s2_loads(0)
            poll_check(252, 48, ("pw", 0))
            await_prep(8, "s_mov_b32 s57, 32\ns_mul_i32 s58, s32, 48", 252); poll_issue(252, 48, ("pw", 1))
            pf = [op for c in range(6) for op in wops(c)] + wdops(0, 25) + wdops(50, 60)
            take(int(OPT.get("wpre", 4)), ("W", 5))
        else:
            s2_loads(1)
            take(int(OPT.get("wpre1", 8)), ("W", 5))
        st(1)
        s2_compute(lname, layer)
        st(2)
        if layer == 0:
            for op in cs_loads(): vm(*op)
        take(ND)
        if layer == 0:
            poll_check(252, 48, ("pw", 1))
            cs_final(lname)
        wait_tags({("s", 10 + layer)})
        st(3)
        signal(3*layer, "s_lshr_b32 s56, s38, 1\ns_lshr_b32 s57, s32, 1\ns_lshl_b32 s58, s33, 1\ns_add_u32 s57, s57, s58", 252)
        take(NA)
        while any(op[1][0] == "W" for op in pf): take(1)
        P = list(glu1_phase(layer)) + [pf]
        glu2_early(layer)
        assert all(op[1][0] == "D" for op in pf)
        await_prep(3*layer, "s_lshl_b32 s57, s20, 2\ns_add_u32 s57, s57, s32\ns_mov_b32 s58, 0", 252)
        wait_tags({("W", 0)})
        a("s_barrier")
        await_(16, 252)
        st(4)
        for k in range(4): vm((f"s_add_u32 s39, s34, 0\n" if k == 0 else "") + f"buffer_load_dwordx4 a[{4*k}:{4*k+3}], v12, s[8:11], s39 offen offset:{512*k} {SC}", ("X", k))
        MH = "s_lshl_b32 s56, s20, 1\ns_lshr_b32 s57, s32, 1\ns_add_u32 s56, s56, s57\ns_and_b32 s57, s32, 1\ns_lshl_b32 s58, s21, 1\ns_add_u32 s57, s57, s58"
        def sigA():
            wait_tags({("hs", 0), ("hs", 1)}); signal(3*layer + 1, MH, 252)
        where = lambda st_: await_prep(3*layer + 1, f"s_add_u32 s57, s22, {32*st_}\ns_lshl_b32 s58, s32, 3", 252)
        def endhook():
            wait_tags({("hs", 2), ("hs", 3)}); signal(3*layer + 1, MH + "\ns_add_u32 s56, s56, 32", 252)
            where(0); poll_issue(252, 8, ("pa", layer))
        glu1_main(layer, P, {int(OPT.get("siga", 214)): sigA, "end": endhook})
        poll_check(252, 8, ("pa", layer))
        glu2_main(layer, lambda: signal(3*layer + 1, MH + "\ns_add_u32 s56, s56, 64", 250), where)
        if layer == 0:
            MB, GT = 4*SLOT, 4*SLOT + 25600
            st(12)
            k1_tables(MB, [])
            wait_tags({("s", 2)})
            signal(2, "s_lshl_b32 s56, s22, 2\ns_add_u32 s56, s56, s32\ns_mov_b32 s57, s24", 252)
            k1_f64()
            a("s_waitcnt lgkmcnt(0)\ns_barrier")
            k1_mbread(MB)
            clear_tags()
            WSC[0] = ""
            pf = [op for c in range(4) for op in wops(c)] + wdops(0, 24) + wops(4) + wops(5) + wdops(24, 25) + wdops(50, 60)
            take(int(OPT.get("pf3", 10)), ("W", 4))
            a(f"s_lshl_b32 s33, s22, 2\ns_add_u32 s33, s33, s32\ns_mul_i32 s33, s33, 20480\ns_add_u32 s33, s33, {X2_OFF}")
            a("s_and_b32 s35, s24, 1\ns_mul_i32 s35, s35, 10240\ns_add_u32 s34, s33, 10240\ns_sub_u32 s34, s34, s35\ns_add_u32 s33, s33, s35")
            await_prep(2, "s_lshl_b32 s57, s22, 2\ns_add_u32 s57, s57, s32\ns_mov_b32 s58, 0", 252)
            await_(8, 252)
            st(13)
            q = []
            for k in range(20):
                kk = k % 10
                t = f"s_add_u32 s35, s{33 if k < 10 else 34}, {kk*1024}\n" if kk % 4 == 0 else ""
                q.append((t + f"buffer_load_dwordx4 v[{120+4*k}:{123+4*k}], v3, s[8:11], s35 offen offset:{1024*(kk % 4)} {SC}", ("x", k)))
            PROFILE = False
            k1_main(1, GT, 0, q, MB if int(OPT.get("zlin", 1)) else None)
            a("fb_l1:")
            take(int(OPT.get("pf4a", 8)), ("W", 4))
            s2_setup(1); s2_fgen(0)
            wait_tags({("s", 3)})
            PROFILE = prof and PL == 1
            st(12)
            signal(6, "s_lshl_b32 s56, s24, 2\ns_add_u32 s56, s56, s32\ns_mov_b32 s57, s22", 252)
            take(int(OPT.get("pf4b", 20)), ("W", 4))
            s2_fgen(1); s2_setup2(1)
            z_wait(6)
            st(13)
    PROFILE = prof
    a(f"""s_or_b32 s56, s2, s32
    s_cmp_lg_u32 s56, 0
    s_cbranch_scc1 {name}_fin
    v_mov_b32 v252, s100
    v_mov_b32 v253, s101
    s_mov_b32 s56, {FL_OFF}
    s_mov_b64 exec, 1
    buffer_store_dwordx2 v[252:253], v3, s[8:11], s56 offen
    s_mov_b64 exec, -1""")
    end(name, 256, agpr=256, vt=112)
    return name, max(LDS_A, LDS_B)

n, l = gen_B()
a.launches.append(f"; @launch grid=(256,1,1) block=(256,1,1) lds={l}" if "list" not in OPT else f"; @launch kernel={n} grid=(256,1,1) block=(256,1,1) lds={l}")
a("code_end:")
a.L, nadd = hazard.pad(a.L)
print("hazard pads inserted:", nadd, file=sys.stderr)
hdr = "".join(l for l in open("interleave_layers__spectral_fnet__glu_gated_glu__prompt.s.ref").readlines()[:13])
out = [x for x in sys.argv[1:] if not x.startswith("--")][0]
open(out, "w").write(a.text(hdr))
```
